```python
import torch

def _softmax(x, axis=-1):
    return torch.softmax(x, dim=axis)

def _gelu(x):
    return torch.nn.functional.gelu(x, approximate='tanh')

def _silu(x):
    return torch.nn.functional.silu(x)

def _sigmoid(x):
    return torch.sigmoid(x)

def _layernorm(x, axis=-1, eps=1e-05):
    m = x.mean(dim=axis, keepdim=True)
    v = x.var(dim=axis, keepdim=True, unbiased=False)
    return (x - m) / torch.sqrt(v + eps)

def _scatter_add(tgt, idx, src, axis=0):
    return tgt.clone().index_add_(axis, idx, src)

def _segment_sum(src, seg, n):
    out = torch.zeros((n,) + src.shape[1:], dtype=src.dtype)
    return out.index_add_(0, seg, src)

def _pad(x, pw):
    flat = tuple((v for pair in reversed(pw) for v in pair))
    return torch.nn.functional.pad(x, flat)
kernel_name = 'standalone__varlen_attn_packed__ragged'

def setup_inputs():

    _w = lambda a: (lambda t: t.to(torch.bfloat16) if t.is_floating_point() else t)(torch.as_tensor(a))
    cu = torch.tensor([0, 992, 1451, 1933, 2583, 3189, 3578, 4512, 5082], dtype=torch.int64)
    T, H, D = (int(cu[-1]), 16, 128)
    return {'q': _w((lambda *s: torch.randn(*s, dtype=torch.bfloat16) * 0.8)(T, H, D)), 'k': _w((lambda *s: torch.randn(*s, dtype=torch.bfloat16) * 0.8)(T, H, D)), 'v': _w((lambda *s: torch.randn(*s, dtype=torch.bfloat16) * 0.05)(T, H, D)), 'cu': _w(cu)}

def reference(q, k, v, cu):
    T, H, D = q.shape
    out = torch.zeros_like(q)
    scale = D ** (-0.5)
    outs = []
    for i in range(len(cu) - 1):
        s, e = (int(cu[i]), int(cu[i + 1]))
        qi, ki, vi = (q[s:e].clone(), k[s:e].clone(), v[s:e].clone())
        p = _softmax(torch.einsum('qhd,khd->hqk', qi, ki) * scale, axis=-1)
        outs.append(torch.einsum('hqk,khd->qhd', p, vi))
    return torch.concatenate(outs, axis=0)
```

```python
import heapq

BIG = 1 << 40


def vr(a, n=1):
    return ['v%d' % i for i in range(a, a + n)]


def ar(a, n=1):
    return ['a%d' % i for i in range(a, a + n)]


def sr(a, n=1):
    return ['s%d' % i for i in range(a, a + n)]


class Reg:
    def __init__(self, f, b, n=1):
        self.f, self.b, self.n = f, b, n

    def __str__(self):
        if self.n == 1:
            return '%s%d' % (self.f, self.b)
        return '%s[%d:%d]' % (self.f, self.b, self.b + self.n - 1)

    def names(self):
        return ['%s%d' % (self.f, i) for i in range(self.b, self.b + self.n)]

    def sub(self, off, n=1):
        assert off + n <= self.n, (str(self), off, n)
        return Reg(self.f, self.b + off, n)


def V(b, n=1):
    return Reg('v', b, n)


def A(b, n=1):
    return Reg('a', b, n)


def S(b, n=1):
    return Reg('s', b, n)


def names(lst):
    out = []
    for x in lst:
        if isinstance(x, Reg):
            out += x.names()
        elif isinstance(x, (list,)):
            out += names(x)
        else:
            out.append(x)
    return out


VEC = ('valu', 'trans')
LDS = ('ds', 'dsw')
VMEM = ('dma', 'vld', 'vst')
COST = dict(valu=4, trans=8, ds=4, dsw=8, dma=12, vld=12, vst=12, salu=4, bar=4, pseudo=0, mark=0)


class Op:
    def __init__(self, text, kind, rd=(), wr=(), rel=None, dl=None, srcc=(), sub=None, cost=None, room=0, lat=None):
        self.text, self.kind = text, kind
        self.rd, self.wr = names(rd), names(wr)
        self.srcc = names(srcc)
        self.rel = rel
        self.dl = dl
        self.sub = sub
        self.cost = COST.get(kind, 4) if cost is None else cost
        self.room = room
        self.lat = lat
        self.preds = {}
        self.succs = []
        self.time = None
        self.idx = None


def edge_lat(p, c, typ):
    k = p.kind
    if typ == 'raw' or typ == 'waw':
        if p.lat is not None and typ == 'raw':
            return p.lat
        if k == 'mfma':
            if c.kind == 'mfma':
                return 0 if set(c.srcc) == set(p.wr) else 64
            return 68
        if k == 'trans':
            return 16 if c.kind == 'mfma' else 12
        if k == 'valu':
            if c.kind == 'mfma' or c.sub == 'perm':
                return 12
            if c.kind in LDS or c.kind in VMEM:
                return 12
            return 8 if typ == 'raw' else 4
        if k == 'ds':
            return 112
        if k == 'salu':
            return 12 if c.kind in VMEM else 4
        if k == 'bar':
            return 16
        return 4
    if k == 'mfma' and c.kind in VEC and set(p.srcc) & set(c.wr):
        return 36
    if k == 'vst':
        return 12
    return 0


class Prog:
    def __init__(self):
        self.ops = []
        self.lastw = {}
        self.readers = {}
        self.nmfma = 0
        self.soft = lambda m: 0

    def add(self, op):
        op.idx = len(self.ops)

        def dep(p, typ):
            if p is op:
                return
            l = edge_lat(p, op, typ)
            if p not in op.preds or op.preds[p] < l:
                op.preds[p] = l
        for r in op.rd:
            if r in self.lastw:
                dep(self.lastw[r], 'raw')
        for r in op.wr:
            if r in self.lastw:
                dep(self.lastw[r], 'waw')
            for p in self.readers.get(r, ()):
                dep(p, 'war')
        for r in op.rd:
            self.readers.setdefault(r, []).append(op)
        for r in op.wr:
            self.lastw[r] = op
            self.readers[r] = []
        if op.kind == 'mfma':
            op.m = self.nmfma
            self.nmfma += 1
        self.ops.append(op)
        return op

    def schedule(self, max_ds=2, verbose=False):
        ops = self.ops
        for o in ops:
            for p in o.preds:
                p.succs.append(o)
        endt = 32 * (self.nmfma + 1)
        for o in reversed(ops):
            if o.kind == 'mfma':
                o.D = 32 * o.m
                continue
            d = endt + 4 * o.idx
            for s in o.succs:
                d = min(d, s.D - max(s.preds[o], 4))
            if o.dl is not None:
                d = min(d, 32 * o.dl + 8)
            o.D = d
        mf = [o for o in ops if o.kind == 'mfma']
        npend = {o: len(o.preds) for o in ops}
        avail = set(o for o in ops if npend[o] == 0 and o.kind != 'mfma')
        out = []
        st = dict(t=0, lastkind=None, pos=0)

        def ready_time(o):
            r = -BIG
            for p, l in o.preds.items():
                x = p.time + l
                if p.kind == 'mfma' and l >= 36 and o.kind != 'mfma':
                    short = (12 if l > 36 else 7) - (st['pos'] - p.pos - 1)
                    if short > 0:
                        x = max(x, st['t'] + 4 * short)
                r = max(r, x)
            return r

        def place(o, t):
            o.time = t
            o.pos = st['pos']
            if o.kind not in ('pseudo', 'mark'):
                st['pos'] += 1
            out.append(o)
            avail.discard(o)
            for s in o.succs:
                npend[s] -= 1
                if npend[s] == 0 and s.kind != 'mfma':
                    avail.add(s)

        def penalty(o):
            lk = st['lastkind']
            if o.kind in LDS + VMEM and lk in VEC:
                return 8
            if o.kind in VMEM and lk == 'salu':
                return 8
            return 0

        def emit(o):
            t = max(st['t'] + penalty(o), ready_time(o))
            place(o, t)
            st['t'] = t + o.cost
            if o.kind not in ('pseudo', 'mark'):
                st['lastkind'] = o.kind

        def needed_set(target):
            need = set()
            stack = [p for p in target.preds if p.time is None]
            while stack:
                p = stack.pop()
                if p in need:
                    continue
                assert p.kind != 'mfma', 'backbone order violates dependences: %s needs %s' % (target.text, p.text)
                need.add(p)
                stack += [q for q in p.preds if q.time is None]
            return need

        def forced(need, g):
            while need:
                t = st['t']
                c = [o for o in avail if o in need]
                rdy = [o for o in c if ready_time(o) <= t + penalty(o)]
                if rdy:
                    o = min(rdy, key=lambda o: (o.D + penalty(o), o.idx))
                else:
                    nxt = min(ready_time(o) for o in c)
                    oth = [o for o in avail if o not in need and (o.rel is None or o.rel <= g)
                           and o.kind != 'bar' and ready_time(o) <= t and t + penalty(o) + o.cost <= nxt + 4]
                    if oth:
                        o = min(oth, key=lambda o: (o.D, o.idx))
                    else:
                        o = min(c, key=lambda o: (ready_time(o), o.D, o.idx))
                emit(o)
                need.discard(o)

        self.overflow = []
        tm = -BIG
        for m, mo in enumerate(mf):
            forced(needed_set(mo), m - 1)
            t = max(st['t'], tm + 32)
            rt = ready_time(mo)
            while rt > st['t'] + 4:
                oth = [o for o in avail if (o.rel is None or o.rel <= m - 1) and o.kind != 'bar'
                       and ready_time(o) <= st['t'] and st['t'] + penalty(o) + o.cost <= max(rt, tm + 32)]
                if not oth:
                    break
                emit(min(oth, key=lambda o: (o.D, o.idx)))
            t = max(st['t'], tm + 32, rt)
            if m > 0 and t > tm + 32:
                self.overflow.append((m, t - tm - 32))
            place(mo, t)
            tm = t
            st['lastkind'] = 'mfma'
            end = tm + 32
            st['t'] = tm + 4

            def cands(kinds, slack=0):
                return [o for o in avail if o.kind in kinds and (o.rel is None or o.rel <= m)
                        and ready_time(o) <= st['t'] + slack]
            used_shadow = False
            while True:
                c = cands(('pseudo', 'mark'), 4)
                if not c:
                    break
                o = min(c, key=lambda o: (o.D, o.idx))
                if o.kind == 'pseudo':
                    used_shadow = True
                place(o, st['t'])
            vm = cands(VMEM, 4)
            br = cands(('bar',), 4)
            if br:
                used_shadow = True
            if not used_shadow and not vm:
                c = cands(('salu',))
                if c:
                    o = min(c, key=lambda o: (o.D, o.idx))
                    place(o, st['t'])
            st['t'] = tm + 8
            if br:
                o = br[0]
                emit(o)
                end -= o.room
            elif vm:
                o = min(vm, key=lambda o: (o.D, o.idx))
                emit(o)
                end -= o.room
            nds = 0
            while nds < max_ds:
                c = cands(LDS)
                c = [o for o in c if st['t'] + o.cost <= end]
                if not c:
                    break
                o = min(c, key=lambda o: (o.D, o.idx))
                if nds >= 1 and o.D > 32 * (m + 3):
                    break
                emit(o)
                nds += 1
            while True:
                c = [o for o in avail if o.kind in VEC + ('salu',) and (o.rel is None or o.rel <= m)
                     and max(ready_time(o), st['t']) + o.cost <= end]
                c = [o for o in c if o.kind != 'salu' or o.D <= 32 * (m + 2)]
                sf = self.soft(m)
                if sf:
                    c = [o for o in c if max(ready_time(o), st['t']) + o.cost <= end - sf or o.D <= 32 * (m + 1) + 8]
                if not c:
                    break
                now = [o for o in c if ready_time(o) <= st['t']]
                if now:
                    o = min(now, key=lambda o: (o.D, o.idx))
                else:
                    o = min(c, key=lambda o: (ready_time(o), o.D, o.idx))
                emit(o)
        rest = set(o for o in ops if o.time is None)
        forced(rest, BIG)
        self.end_time = st['t']
        self.out = out
        return out


class Finalizer:
    def __init__(self):
        self.lines = []
        self.lg = []
        self.vm = []
        self.hist = []
        self.pos = 0
        self.nops = 0
        self.nwaits = 0

    def _need(self, op, lg, vm):
        touched = set(op.rd) | set(op.wr)
        nl = nv = None
        for i, w in enumerate(lg):
            if touched & w:
                nl = len(lg) - i - 1
        for i, w in enumerate(vm):
            if touched & w:
                nv = len(vm) - i - 1
        return nl, nv

    def _wait(self, nl, nv):
        parts = []
        if nv is not None:
            nv = min(nv, 63)
            parts.append('vmcnt(%d)' % nv)
            del self.vm[:max(0, len(self.vm) - nv)]
        if nl is not None:
            nl = min(nl, 15)
            parts.append('lgkmcnt(%d)' % nl)
            del self.lg[:max(0, len(self.lg) - nl)]
        self.lines.append('s_waitcnt ' + ' '.join(parts))
        self.pos += 1
        self.nwaits += 1

    def _hazard(self, c):
        need = 0
        rd, wr = set(c.rd), set(c.wr)
        for p, pp in reversed(self.hist):
            dist = self.pos - pp - 1
            if dist >= 20:
                break
            pw = set(p.wr)
            ws = 0
            if p.kind in VEC:
                if c.kind == 'mfma' and pw & rd:
                    ws = max(ws, 2)
                if p.kind == 'trans' and c.kind in ('valu',) and pw & rd:
                    ws = max(ws, 1)
                if p.kind == 'trans' and c.kind == 'trans' and pw & rd:
                    ws = max(ws, 1)
                if c.sub == 'perm' and pw & (rd | wr):
                    ws = max(ws, 2)
                if c.sub == 'rdlane' and pw & rd:
                    ws = max(ws, 1)
                sg = set(x for x in pw if isinstance(x, str) and (x[0] == 's' or x == 'vcc'))
                if sg & rd:
                    if c.kind in VEC:
                        ws = max(ws, 2)
                    elif c.kind in VMEM:
                        ws = max(ws, 5)
                    elif c.kind == 'salu':
                        ws = max(ws, 2)
            if p.kind == 'mfma':
                if c.kind == 'mfma':
                    cc = set(c.srcc)
                    if pw & (rd - cc):
                        ws = max(ws, 12)
                    if pw & cc and cc != pw:
                        ws = max(ws, 10)
                    if pw & wr and not (pw & cc):
                        ws = max(ws, 12) if wr != pw else ws
                elif pw & (rd | wr):
                    ws = max(ws, 12)
                if c.kind in VEC and set(p.srcc) & wr:
                    ws = max(ws, 7)
            if p.kind == 'salu' and 'm0' in pw and c.kind == 'dma':
                ws = max(ws, 1)
            if p.kind == 'vst' and set(p.rd) & wr:
                ws = max(ws, 2)
            need = max(need, ws - dist)
        return need

    def run(self, ops):
        n = len(ops)
        for i, op in enumerate(ops):
            if op.kind == 'mark':
                self.lines.append(op.text)
                continue
            nl, nv = self._need(op, self.lg, self.vm)
            if nl is not None or nv is not None:
                self._wait(nl, nv)
            if op.kind != 'pseudo':
                h = self._hazard(op)
                while h > 0:
                    k = min(h, 16)
                    self.lines.append('s_nop %d' % (k - 1))
                    self.pos += k
                    self.nops += 1
                    h -= k
                tl = op.text.split('\n')
                self.lines += tl
                self.pos += len(tl) - 1
                self.hist.append((op, self.pos))
                if len(self.hist) > 64:
                    del self.hist[:32]
                self.pos += 1
                if op.kind in LDS:
                    self.lg.append(set(op.wr) if op.kind == 'ds' else set(x for x in op.wr if isinstance(x, tuple) and x[0] == 'dswdone'))
                elif op.kind in VMEM:
                    self.vm.append(set(op.wr) - {'vmorder'})
                assert len(self.vm) <= 63 + 50
            if op.kind == 'mfma':
                nl = nv = None
                j = i + 1
                while j < n:
                    o = ops[j]
                    if o.kind != 'mark':
                        a, b = self._need(o, self.lg, self.vm)
                        if a is not None:
                            nl = a if nl is None else min(nl, a)
                        if b is not None:
                            nv = b if nv is None else min(nv, b)
                    if o.kind == 'mfma':
                        break
                    if o.time is not None and op.time is not None and o.time > op.time + 40:
                        break
                    j += 1
                if nl is not None or nv is not None:
                    self._wait(nl, nv)
        return self.lines
```

```python
import sys, math, struct
from sched import *

NAME = 'standalone__varlen_attn_packed__ragged_kernel'
CU = [0, 992, 1451, 1933, 2583, 3189, 3578, 4512, 5082]
LEN = [CU[i + 1] - CU[i] for i in range(8)]
ROW = 4096

class Cfg:
    N = 6
    stamps = False
    store_flags = ''
    soft = 4
cfg = Cfg()

def f2u(x):
    return struct.unpack('<I', struct.pack('<f', x))[0]

CSCALE = f2u(math.log2(math.e) / math.sqrt(128.0))
LTHR = f2u(2.0 ** 40)

SSET = [V(16, 16), V(32, 16)]
NMSET = [V(48, 16), V(64, 16)]
PSET = [V(80, 8), V(88, 8)]
vKA = V(96, 8)
vQF = V(104, 8)
vVA = V(112)
vQL = V(113)
vDK = V(114, 2)
vDV = V(116, 2)
vQO = V(118, 4)
LACC = [V(122, 2), V(124, 2)]
RCP = [V(126), V(127)]
vHM = V(15)
TMP = V(0, 15)
KF = A(64, 32)
VF = A(96, 32)

sQP, sKP, sVP, sOP = S(4, 2), S(6, 2), S(8, 2), S(10, 2)
sW = S(12)
sSUB = S(13)
sC = S(14, 2)
def SRD(job, t):
    return S(16 + 16 * job + 4 * t, 4)
sKO, sVO = S(48), S(49)
sWK, sWV = S(50), S(51)
def sQROW(job):
    return S(52 + job)
sT = [S(56), S(57), S(58), S(59)]
sFLAG = S(60)
sTHR = S(61)
sDBG = S(64, 4)
sST = S(70, 2)

def KBASE(): return 0
def VBASE(): return cfg.N * 8192
def QBASE(): return 2 * cfg.N * 8192
def LDS_BYTES(): return QBASE() + 65536


class Job:
    def __init__(self, seq, wide, q0, qstride, O, Q, qtmp):
        self.seq, self.wide = seq, wide
        self.q0, self.qstride = q0, qstride
        self.L = LEN[seq]
        self.n = (self.L + 31) // 32
        self.rem = self.L - 32 * (self.n - 1)
        self.O, self.Q, self.qtmp = O, Q, qtmp
        self.nb = 2 if wide else 1


class Builder:
    def __init__(self, jobs):
        self.jobs = jobs
        self.P = Prog()
        self.tmpi = 0
        self.sti = 0

    def add(self, *a, **k):
        return self.P.add(Op(*a, **k))

    def valu(self, text, rd, wr, **k):
        return self.add(text, 'valu', rd, wr, **k)

    def salu(self, text, rd, wr, **k):
        return self.add(text, 'salu', rd, wr, **k)

    def tmp2(self):
        r = TMP.sub(2 * (self.tmpi % 6), 2)
        self.tmpi += 1
        return r

    def stmp(self):
        r = sT[self.sti % 4]
        self.sti += 1
        return r

    def stamp(self, i, after=(), rel=None):
        if not cfg.stamps:
            return
        r = S(72 + 2 * i, 2)
        self.add('s_memtime %s' % r, 'salu', list(after), [r, ('stamp', i)], rel=rel, dl=rel)

    def job_setup(self, j, which, rel=None):
        job = self.jobs[j]
        base = CU[job.seq] * ROW
        nrec = (job.L - 1) * ROW + 256
        ptr = [sQP, sKP, sVP, sOP]
        for t in which:
            d = SRD(j, t)
            self.salu('s_add_u32 %s, %s, 0x%x\ns_addc_u32 %s, %s, 0' % (d.sub(0), ptr[t].sub(0), base, d.sub(1), ptr[t].sub(1)),
                      [ptr[t]], [d.sub(0, 2)], rel=rel, cost=8)
            self.salu('s_mov_b32 %s, 0x%x' % (d.sub(2), nrec), [], [d.sub(2)], rel=rel)
            self.salu('s_mov_b32 %s, 0x20000' % d.sub(3), [], [d.sub(3)], rel=rel)

    def job_qrow(self, j, rel=None):
        job = self.jobs[j]
        q = sQROW(j)
        t = self.stmp()
        self.salu('s_mul_i32 %s, %s, 0x%x' % (q, sSUB, job.qstride * ROW), [sSUB], [q], rel=rel)
        self.salu('s_mul_i32 %s, %s, 0x%x' % (t, sW, 32 * job.nb * ROW), [sW], [t], rel=rel)
        self.salu('s_add_u32 %s, %s, %s' % (q, q, t), [q, t], [q], rel=rel)
        if job.q0:
            self.salu('s_add_u32 %s, %s, 0x%x' % (q, q, job.q0 * ROW), [q], [q], rel=rel)

    def dma_block(self, which, g, rels):
        j, i = self.blocks[g]
        job = self.jobs[j]
        so = sKO if which == 'K' else sVO
        if i == 0:
            self.salu('s_mov_b32 %s, 0' % so, [], [so], rel=rels[0], dl=rels[0])
        elif i == 1:
            self.salu('s_mov_b32 %s, 0x%x' % (so, job.rem * ROW), [], [so], rel=rels[0], dl=rels[0])
        else:
            self.salu('s_add_u32 %s, %s, 0x%x' % (so, so, 32 * ROW), [so], [so], rel=rels[0], dl=rels[0])
        slot = g % cfg.N
        wb = sWK if which == 'K' else sWV
        self.salu('s_add_u32 m0, %s, 0x%x' % (wb, slot * 8192), [wb], ['m0'], rel=rels[1], dl=rels[1])
        srd = SRD(j, 1 if which == 'K' else 2)
        vo = vDK if which == 'K' else vDV
        for t in range(2):
            self.add('buffer_load_dwordx4 %s, %s, %s offen %slds' % (vo.sub(t), srd, so, 'offset:1024 ' if t else ''),
                     'dma', [vo.sub(t), srd, so, 'm0', ('free', which, slot), 'vmorder'], [('dma', which, g, t), 'vmorder'],
                     rel=rels[2 + t], dl=rels[2 + t], room=8, lat=4)

    def barrier(self, pub, free, rel):
        rd, wr = ['barseq'], ['barseq']
        for which, g in pub:
            rd += [('dma', which, g, 0), ('dma', which, g, 1)]
            wr += [('pub', which, g)]
        for which, g in free:
            rd += self.rdtok[(which, g)]
            wr += [('free', which, g % cfg.N)]
        self.add('s_barrier', 'bar', rd, wr, rel=rel, dl=rel, room=4)

    def read_k(self, g, rel0, step=1):
        slot = g % cfg.N
        toks = []
        for s in range(8):
            d = KF.sub(4 * s, 4)
            tok = ('rd', 'K', g, s)
            toks.append(tok)
            r = None if rel0 is None else rel0 + s * step
            self.add('ds_read_b128 %s, %s offset:%d' % (d, vKA.sub(s), KBASE() + slot * 8192), 'ds',
                     [vKA.sub(s), ('pub', 'K', g)], [d, tok], rel=r, dl=r)
        self.rdtok[('K', g)] = toks

    def read_v(self, g, relf, nks):
        slot = g % cfg.N
        toks = []
        n = 0
        for ks in range(nks):
            for db in range(4):
                for jj in range(2):
                    d = VF.sub(4 * (4 * ks + db) + 2 * jj, 2)
                    tok = ('rd', 'V', g, n)
                    toks.append(tok)
                    r = relf(n)
                    self.add('ds_read_b64_tr_b16 %s, %s offset:%d' % (d, vVA, slot * 8192 + (4 * ks + 2 * jj) * 1024 + db * 256),
                             'ds', [vVA, ('pub', 'V', g)], [d, tok], rel=r, dl=r)
                    n += 1
        self.rdtok[('V', g)] = toks

    def q_load(self, j, X, rel=None):
        job = self.jobs[j]
        loads = []
        for u in range(2):
            so = self.stmp()
            self.salu('s_add_u32 %s, %s, 0x%x' % (so, sQROW(j), (32 * X + 16 * u) * ROW), [sQROW(j)], [so],
                      rel=None if rel is None else rel(4 * u) - 1)
            for t in range(4):
                jj = 4 * u + t
                T = job.qtmp[(8 * X + jj) % len(job.qtmp)]
                r = None if rel is None else rel(jj)
                self.add('buffer_load_dwordx4 %s, %s, %s, %s offen' % (T, vQO.sub(t), SRD(j, 0), so), 'vld',
                         [vQO.sub(t), SRD(j, 0), so, 'vmorder'], [T, 'vmorder'], rel=r, dl=r, room=8, lat=4)
                loads.append(T)
        return loads

    def q_conv(self, j, X, loads, packed, rel=None):
        job = self.jobs[j]
        self.add('', 'mark', [], [('stgx', X)])
        ids = []
        for jj, T in enumerate(loads):
            r = None if rel is None else rel(jj)
            for e in range(4):
                x = T.sub(e)
                t = self.tmp2()
                self.valu('v_lshlrev_b32 %s, 16, %s' % (t.sub(0), x), [x], [t.sub(0)], rel=r)
                self.valu('v_and_b32 %s, 0xffff0000, %s' % (t.sub(1), x), [x], [t.sub(1)], rel=r)
                if packed:
                    self.valu('v_pk_mul_f32 %s, %s, %s' % (t, t, sC), [t, sC], [t], rel=r)
                else:
                    for k in range(2):
                        self.valu('v_mul_f32 %s, %s, %s' % (t.sub(k), sC.sub(0), t.sub(k)), [t.sub(k), sC], [t.sub(k)], rel=r)
                self.valu('v_cvt_pk_bf16_f32 %s, %s, %s' % (x, t.sub(0), t.sub(1)), [t], [x], rel=r)
            tok = ('stg', j, X, 'q', jj)
            ids.append(tok)
            self.add('ds_write_b128 %s, %s offset:%d' % (vQL, T, X * 8192 + jj * 1024), 'dsw',
                     [vQL, T, ('stgx', X)], [tok], rel=r)
        for s in range(8):
            d = job.Q[X].sub(4 * s, 4)
            self.add('ds_read_b128 %s, %s offset:%d' % (d, vQF.sub(s), X * 8192), 'ds',
                     [vQF.sub(s), ('stgx', X)] + ids, [d])

    def qk(self, t):
        job = self.jobs[t['j']]
        Sreg = SSET[t['h'] % 2]
        NM = NMSET[t['nm']]
        for s in range(8):
            a, b = KF.sub(4 * s, 4), job.Q[t['X']].sub(4 * s, 4)
            if s == 0:
                c = None if t['first'] else NM
            else:
                c = Sreg
            self.add('v_mfma_f32_32x32x16_bf16 %s, %s, %s, %s' % (Sreg, a, b, c if c else '0'), 'mfma',
                     [a, b] + ([c] if c else []), [Sreg], srcc=[c] if c else [])

    def pv(self, t):
        job = self.jobs[t['j']]
        Pr = PSET[t['h'] % 2]
        O = job.O[t['X']]
        for ks in range(t['nks']):
            for db in range(4):
                a, b, d = VF.sub(4 * (4 * ks + db), 4), Pr.sub(4 * ks, 4), O.sub(16 * db, 16)
                c = None if (t['first'] and ks == 0) else d
                self.add('v_mfma_f32_32x32x16_bf16 %s, %s, %s, %s' % (d, a, b, c if c else '0'), 'mfma',
                         [a, b] + ([c] if c else []), [d], srcc=[c] if c else [])

    def sm(self, t):
        job = self.jobs[t['j']]
        Sreg, Pr = SSET[t['h'] % 2], PSET[t['h'] % 2]
        NM, L = NMSET[t['nm']], LACC[t['nm']]
        nr = 8 * t['nks']
        used = list(range(nr))
        if t['first']:
            rem = job.rem
            row = lambda r: (r & 3) + 8 * (r >> 2)
            used = [r for r in range(nr) if row(r) < rem]
            half = [r for r in used if row(r) + 4 >= rem]
            tt = self.tmp2()
            hn = nr // 2
            for k in range(2):
                s0 = k * hn
                x = tt.sub(k)
                self.valu('v_max3_f32 %s, %s, %s, %s' % (x, Sreg.sub(s0), Sreg.sub(s0 + 1), Sreg.sub(s0 + 2)),
                          [Sreg.sub(s0, 3)], [x])
                r = s0 + 3
                while r + 1 < s0 + hn:
                    self.valu('v_max3_f32 %s, %s, %s, %s' % (x, x, Sreg.sub(r), Sreg.sub(r + 1)), [x, Sreg.sub(r, 2)], [x])
                    r += 2
            a, b = tt.sub(0), tt.sub(1)
            self.valu('v_max3_f32 %s, %s, %s, %s' % (a, a, Sreg.sub(hn - 1), Sreg.sub(nr - 1)),
                      [a, Sreg.sub(hn - 1), Sreg.sub(nr - 1)], [a])
            self.valu('v_max_f32 %s, %s, %s' % (a, a, b), [tt], [a])
            self.valu('v_mov_b32 %s, %s' % (b, a), [a], [b])
            self.valu('v_permlane32_swap_b32 %s, %s' % (a, b), [tt], [tt], sub='perm')
            self.valu('v_min_f32_e64 %s, -%s, -%s' % (NM.sub(0), a, b), [tt], [NM.sub(0)])
            if half:
                self.valu('v_add_f32 %s, %s, %s' % (a, NM.sub(0), vHM), [NM.sub(0), vHM], [a])
            for r in used:
                x = Sreg.sub(r)
                nm = a if r in half else NM.sub(0)
                self.valu('v_add_f32 %s, %s, %s' % (x, nm, x), [x, nm], [x])
            for r in range(1, 16):
                self.valu('v_mov_b32 %s, %s' % (NM.sub(r), NM.sub(0)), [NM.sub(0)], [NM.sub(r)])
        cnt = 0
        for r in range(nr):
            x = Sreg.sub(r)
            if r in used:
                self.add('v_exp_f32 %s, %s' % (x, x), 'trans', [x], [x])
                acc = L.sub(cnt % 2)
                if t['first'] and cnt < 2:
                    self.valu('v_mov_b32 %s, %s' % (acc, x), [x], [acc])
                else:
                    self.valu('v_add_f32 %s, %s, %s' % (acc, acc, x), [acc, x], [acc])
                cnt += 1
            if r % 2 == 1:
                p = Pr.sub(r // 2)
                lo, hi = Sreg.sub(r - 1), x
                if r in used:
                    self.valu('v_cvt_pk_bf16_f32 %s, %s, %s' % (p, lo, hi), [lo, hi], [p])
                elif r - 1 in used:
                    self.valu('v_cvt_pk_bf16_f32 %s, %s, 0' % (p, lo), [lo], [p])
                else:
                    self.valu('v_mov_b32 %s, 0' % p, [], [p])
        if t['first'] and cnt < 2:
            self.valu('v_mov_b32 %s, 0' % L.sub(1), [], [L.sub(1)])

    def lfinal(self, t):
        L, rc = LACC[t['nm']], RCP[t['nm']]
        a, b = L.sub(0), L.sub(1)
        self.valu('v_add_f32 %s, %s, %s' % (a, a, b), [L], [a])
        self.valu('v_mov_b32 %s, %s' % (b, a), [a], [b])
        self.valu('v_permlane32_swap_b32 %s, %s' % (a, b), [L], [L], sub='perm')
        self.valu('v_add_f32 %s, %s, %s' % (a, a, b), [L], [a])
        self.add('v_rcp_f32 %s, %s' % (rc, a), 'trans', [a], [rc])
        self.valu('v_cmp_nge_f32 vcc, %s, %s' % (sTHR, a), [sTHR, a], ['vcc'])
        bit = 1 << (2 * t['j'] + t['X'])
        st = self.stmp()
        self.salu('s_cmp_lg_u64 vcc, 0\ns_cselect_b32 %s, %d, 0' % (st, bit), ['vcc'], [st], cost=8)
        self.salu('s_or_b32 %s, %s, %s' % (sFLAG, sFLAG, st), [sFLAG, st], [sFLAG])

    def epilogue(self, t, packed):
        j, X = t['j'], t['X']
        job = self.jobs[j]
        O, rc = job.O[X], RCP[t['nm']]
        self.add('', 'mark', [], [('stgx', X)])
        ids = []
        for s in range(8):
            src = O.sub(8 * s, 8)
            if O.f == 'v':
                dst = src.sub(0, 4)
                for e in range(4):
                    x = src.sub(2 * e, 2)
                    if packed:
                        rp = V(rc.b & ~1, 2)
                        h = rc.b & 1
                        self.valu('v_pk_mul_f32 %s, %s, %s op_sel:[0,%d] op_sel_hi:[1,%d]' % (x, x, rp, h, h), [x, rc], [x])
                    else:
                        for k in range(2):
                            self.valu('v_mul_f32 %s, %s, %s' % (x.sub(k), rc, x.sub(k)), [x.sub(k), rc], [x.sub(k)])
                    self.valu('v_cvt_pk_bf16_f32 %s, %s, %s' % (dst.sub(e), x.sub(0), x.sub(1)), [x], [dst.sub(e)])
            else:
                raise NotImplementedError
            tok = ('stg', j, X, 'o', s)
            ids.append(tok)
            self.add('ds_write_b128 %s, %s offset:%d' % (vQF.sub(s), dst, X * 8192), 'dsw', [vQF.sub(s), dst, ('stgx', X)], [tok])
        for u in range(2):
            so = self.stmp()
            self.salu('s_add_u32 %s, %s, 0x%x' % (so, sQROW(j), (32 * X + 16 * u) * ROW), [sQROW(j)], [so])
            for tt in range(4):
                jj = 4 * u + tt
                d = job.ostage[X].sub(4 * jj, 4)
                self.add('ds_read_b128 %s, %s offset:%d' % (d, vQL, X * 8192 + jj * 1024), 'ds',
                         [vQL, ('stgx', X)] + ids, [d])
                self.add('buffer_store_dwordx4 %s, %s, %s, %s offen%s' % (d, vQO.sub(tt), SRD(j, 3), so, cfg.store_flags), 'vst',
                         [d, vQO.sub(tt), SRD(j, 3), so, 'vmorder'], ['vmorder'], room=8, lat=4)

    def build(self):
        jobs, N = self.jobs, cfg.N
        self.blocks = [(j, i) for j, job in enumerate(jobs) for i in range(job.n)]
        G = len(self.blocks)
        self.rdtok = {}
        tiles = []
        for g, (j, i) in enumerate(self.blocks):
            job = jobs[j]
            for X in range(job.nb):
                tiles.append(dict(j=j, X=X, g=g, i=i, h=len(tiles), first=(i == 0), last=(i == job.n - 1),
                                  nks=(1 if (i == 0 and job.rem <= 16) else 2), nm=job.nm[X]))
        H = len(tiles)
        T = lambda h: tiles[h] if 0 <= h < H else None
        start, m = {}, 0
        for h in range(-1, H + 2):
            start[h] = m
            if T(h + 1): m += 8
            if T(h - 1): m += 4 * T(h - 1)['nks']
        self.start = start

        def kread(h):
            a, b = T(h + 2), T(h + 1)
            return a['g'] if a and (not b or a['g'] != b['g']) else None

        def vread(h):
            a, b = T(h), T(h - 1)
            return a['g'] if a and (not b or a['g'] != b['g']) else None

        nxt = dict(K=0, V=0)
        freeq = dict(K=N, V=N)
        begun = dict(K=[], V=[])

        self.job_setup(0, [1])
        self.dma_block('K', 0, [None] * 4); nxt['K'] = 1; freeq['K'] -= 1
        self.job_setup(0, [0])
        self.job_qrow(0)
        ql = [self.q_load(0, X) for X in range(jobs[0].nb)]
        self.job_setup(0, [2])
        order = []
        lead = 1 if jobs[0].wide else 2
        for g in range(1, lead):
            order.append('K')
        for g in range(N - lead):
            order += ['K', 'V']
        for w in order:
            self.dma_block(w, nxt[w], [None] * 4); nxt[w] += 1; freeq[w] -= 1
        last_start_op = self.P.ops[-1]
        self.add('', 'mark', ['vmorder'], ['startdone'])
        self.job_setup(0, [3])
        for j in range(1, len(jobs)):
            self.job_setup(j, [0, 1, 2, 3])
            self.job_qrow(j)
        self.stamp(1, [ql[0][0], 'startdone'])
        for X in range(jobs[0].nb):
            n0 = len(self.P.ops)
            self.q_conv(0, X, ql[X], packed=(X == 0))
            for o in self.P.ops[n0:]:
                o.preds[last_start_op] = 4
        self.barrier([('K', 0)], [], None)
        self.read_k(0, None)
        begun['K'].append((-2, 0))
        self.stamp(2, [KF, jobs[0].Q[0]])

        qdone = {0}
        for h in range(-1, H + 1):
            b = start[h]
            bp = start.get(h - 1, -BIG)
            kr, vr_ = kread(h), vread(h)
            steady = T(h + 1) and T(h - 1) and T(h - 1)['nks'] == 2 and h >= 1
            if kr is not None or vr_ is not None:
                pub = ([('K', kr)] if kr is not None else []) + ([('V', vr_)] if vr_ is not None else [])
                fr = [('K', g) for hh, g in begun['K'] if hh <= h - 1] + [('V', g) for hh, g in begun['V'] if hh <= h - 2]
                begun['K'] = [x for x in begun['K'] if x[0] > h - 1]
                begun['V'] = [x for x in begun['V'] if x[0] > h - 2]
                self.barrier(pub, fr, b - 2 if h >= 0 else None)
                for w, g in fr:
                    freeq[w] += 1
            self.add('; ---- half %d' % h, 'mark', [], [], rel=b - 1, dl=b - 1)
            if T(h + 1):
                self.qk(T(h + 1))
            if kr is not None:
                self.read_k(kr, b)
                begun['K'].append((h, kr))
            if T(h - 1):
                self.pv(T(h - 1))
                if T(h - 1)['last']:
                    self.epilogue(T(h - 1), packed=(h >= H))
            if vr_ is not None:
                wide = jobs[T(h)['j']].wide
                pvs = b + (8 if T(h + 1) else 0)
                self.read_v(vr_, (lambda n: pvs + n), T(h)['nks'])
                begun['V'].append((h, vr_))
            if T(h):
                self.sm(T(h))
                if T(h)['last']:
                    self.lfinal(T(h))
            if T(h + 2) and kr is not None:
                e = start[h + 1] - 1
                self.add('', 'pseudo', [KF], [], rel=e, dl=e)
            if vr_ is not None:
                e = start[h + 1] + (8 if T(h + 2) else 0) - 1
                self.add('', 'pseudo', [VF.sub(0, 16)], [], rel=e, dl=e)
                if T(h)['nks'] == 2:
                    self.add('', 'pseudo', [VF.sub(16, 16)], [], rel=e + 4, dl=e + 4)
            if kread(h + 1) is not None or vread(h + 1) is not None:
                e = start[h + 1]
                for w, rl in (('K', [e - 13, e - 11, e - 8, e - 7]), ('V', [e - 12, e - 6, e - 4, e - 3])):
                    while freeq[w] > 0 and nxt[w] < G:
                        self.dma_block(w, nxt[w], rl); nxt[w] += 1; freeq[w] -= 1
            t = T(h)
            if t and t['j'] + 1 < len(jobs) and t['j'] + 1 not in qdone and h >= 3:
                j2 = t['j'] + 1
                qdone.add(j2)
                nt = len(jobs[j2].qtmp)
                for X in range(jobs[j2].nb):
                    if nt >= 8:
                        ld = self.q_load(j2, X, rel=lambda jj, X=X: b + 16 * (8 * X + jj) // 2 + 10)
                        self.q_conv(j2, X, ld, packed=False, rel=lambda jj, X=X: b + 16 * (8 * X + jj) // 2 + 10 + 96)
                    else:
                        raise NotImplementedError
            if h == 2:
                self.stamp(3, [], rel=b)
            if h == H - 1:
                self.stamp(4, [], rel=b)
        self.P.soft = lambda m: cfg.soft
        ops = self.P.schedule()
        F = Finalizer()
        lines = F.run(ops)
        self.F = F
        return [l for l in lines if l]


def make_types():
    OA, OB = V(128, 64), V(192, 64)
    Q1 = [A(0, 32), A(32, 32)]
    Q2 = [A(128, 32), A(160, 32)]
    qt_O = [V(128 + 4 * i, 4) for i in range(16)]
    types = []

    def one(seq, cnt):
        j = Job(seq, True, 0, 256, [OA, OB], Q1, qt_O)
        j.nm = [0, 1]
        j.ostage = [A(192, 32), A(224, 32)]
        return dict(jobs=[j], cnt=cnt)
    return one


def common_head(slot_to_type):
    L = []
    a = L.append
    a('s_cmp_ge_u32 s2, %d' % cfg.nwg)
    a('s_cbranch_scc1 L_exit')
    a('s_load_dwordx4 s[4:7], s[0:1], 0')
    a('s_load_dwordx2 s[8:9], s[0:1], 16')
    a('s_load_dwordx2 s[10:11], s[0:1], 32')
    if cfg.stamps:
        a('s_load_dwordx2 %s, s[0:1], 48' % sDBG.sub(0, 2))
        a('s_memtime s[72:73]')
        a('s_memrealtime s[90:91]')
    a('v_lshrrev_b32 v1, 6, v0')
    a('v_and_b32 v0, 63, v0')
    a('v_readfirstlane_b32 %s, v1' % sW)
    a('v_and_b32 v2, 15, v0')
    a('v_lshrrev_b32 v3, 5, v0')
    a('v_lshrrev_b32 v4, 4, v0')
    a('v_and_b32 v5, 31, v0')
    a('v_lshl_add_u32 v6, v1, 3, v4')
    for t in range(2):
        if t:
            a('v_add_u32 v6, 4, v6')
        a('v_and_b32 v7, 15, v6')
        a('v_xor_b32 v7, v7, v2')
        a('v_lshlrev_b32 v7, 4, v7')
        a('v_lshl_add_u32 %s, v6, 12, v7' % vDK.sub(t))
    a('v_subrev_u32 %s, 0x400, %s' % (vDK.sub(1), vDK.sub(1)))
    for t in range(4):
        a('v_add_u32 v6, %d, v4' % (4 * t))
        a('v_xor_b32 v7, v6, v2')
        a('v_lshlrev_b32 v7, 4, v7')
        a('v_lshl_add_u32 %s, v6, 12, v7' % vQO.sub(t))
    a('v_bfe_u32 v8, v0, 2, 2')
    a('v_and_b32 v9, 3, v0')
    a('v_lshl_add_u32 v6, v1, 3, v8')
    a('v_lshlrev_b32 v7, 4, v9')
    a('v_lshl_add_u32 v7, v4, 6, v7')
    a('v_lshl_add_u32 %s, v6, 12, v7' % vDV.sub(0))
    a('v_add_u32 %s, 0x%x, %s' % (vDV.sub(1), 4 * ROW - 1024, vDV.sub(0)))
    a('s_and_b32 s3, s2, 7')
    a('s_lshr_b32 s13, s2, 3')
    a('s_lshl_b32 s3, s3, 1')
    a('s_and_b32 s62, s13, 1')
    a('s_add_u32 s3, s3, s62')
    a('s_lshr_b32 s13, s13, 1')
    a('s_lshl_b32 s3, s3, 8')
    a('s_lshl_b32 %s, %s, 11' % (sWK, sW))
    a('s_add_u32 %s, %s, 0x%x' % (sWV, sWK, VBASE()))
    a('s_mov_b32 %s, 0x%x' % (sC.sub(0), CSCALE))
    a('s_mov_b32 %s, 0x%x' % (sC.sub(1), CSCALE))
    a('s_mov_b32 %s, 0x%x' % (sTHR, LTHR))
    a('s_mov_b32 %s, 0' % sFLAG)
    acc = 0
    for ti, cnt in enumerate(slot_to_type):
        acc += cnt
        if ti < len(slot_to_type) - 1:
            a('s_cmp_lt_u32 s13, %d' % acc)
            a('s_cbranch_scc0 L_not%d' % ti)
        a('s_getpc_b64 s[62:63]')
        a('L_pc%d:' % ti)
        a('s_add_u32 s62, s62, L_type%d-L_pc%d' % (ti, ti))
        a('s_addc_u32 s63, s63, 0')
        a('s_setpc_b64 s[62:63]')
        a('L_not%d:' % ti)
    return L


def type_head(first_slot):
    L = []
    a = L.append
    if first_slot:
        a('s_sub_u32 s13, s13, %d' % first_slot)
    a('v_xor_b32 v6, v3, v2')
    a('v_lshlrev_b32 v6, 4, v6')
    a('v_lshl_add_u32 %s, v5, 8, v6' % vKA.sub(0))
    a('v_lshlrev_b32 v7, 14, v1')
    a('v_add_u32 v7, 0x%x, v7' % QBASE())
    a('v_lshl_add_u32 %s, v0, 4, v7' % vQL)
    a('v_add_u32 %s, v7, %s' % (vQF.sub(0), vKA.sub(0)))
    for s in range(1, 8):
        a('v_xor_b32 %s, 0x%x, %s' % (vKA.sub(s), 32 * s, vKA.sub(0)))
        a('v_xor_b32 %s, 0x%x, %s' % (vQF.sub(s), 32 * s, vQF.sub(0)))
    a('v_and_b32 v6, 1, v9')
    a('v_lshrrev_b32 v7, 1, v9')
    a('v_lshl_add_u32 v6, v6, 1, v7')
    a('v_lshlrev_b32 v6, 3, v6')
    a('v_lshl_add_u32 v6, v8, 6, v6')
    a('v_and_b32 v7, 1, v4')
    a('v_lshl_add_u32 v6, v7, 5, v6')
    a('v_lshl_add_u32 v6, v3, 10, v6')
    a('v_add_u32 %s, 0x%x, v6' % (vVA, VBASE()))
    a('v_sub_u32 v6, 0, v3')
    a('v_and_b32 %s, 0xff800000, v6' % vHM)
    a('s_waitcnt lgkmcnt(0)')
    for p in (sKP, sQP, sVP, sOP):
        a('s_add_u32 %s, %s, s3' % (p.sub(0), p.sub(0)))
        a('s_addc_u32 %s, %s, 0' % (p.sub(1), p.sub(1)))
    return L


def stamp_tail():
    L = []
    a = L.append
    a('s_memtime s[82:83]')
    a('s_waitcnt vmcnt(0)')
    a('s_memtime s[84:85]')
    a('s_memrealtime s[92:93]')
    a('s_getreg_b32 s94, hwreg(HW_REG_XCC_ID)')
    a('s_waitcnt lgkmcnt(0)')
    a('s_mov_b32 s66, 0x100000')
    a('s_mov_b32 s67, 0x20000')
    a('s_lshl_b32 s62, s2, 2')
    a('s_add_u32 s62, s62, %s' % sW)
    a('s_lshl_b32 s62, s62, 6')
    a('v_mov_b32 v1, 0')
    for i in range(7):
        a('v_mov_b32 v2, s%d' % (72 + 2 * i))
        a('buffer_store_dword v2, v1, s[64:67], s62 offen offset:%d' % (4 * i))
    for i, r in enumerate((90, 92, 94)):
        a('v_mov_b32 v2, s%d' % r)
        a('buffer_store_dword v2, v1, s[64:67], s62 offen offset:%d' % (4 * (8 + i)))
    return L


def dedupe(lines):
    chunks, cur = [], []
    for l in lines:
        if l.startswith('; ---- half') or l == 's_endpgm' or l.startswith('; ===='):
            chunks.append(cur)
            cur = []
        cur.append(l)
    chunks.append(cur)
    cnt = {}
    for c in chunks:
        if c and c[0].startswith('; ---- half'):
            k = '\n'.join(c[1:])
            cnt[k] = cnt.get(k, 0) + 1
    mac, defs, body = {}, [], []
    for c in chunks:
        if c and c[0].startswith('; ---- half'):
            k = '\n'.join(c[1:])
            if cnt[k] > 1 and len(c) > 8:
                if k not in mac:
                    mac[k] = 'HALF%d' % len(mac)
                    defs += ['.macro %s' % mac[k]] + c[1:] + ['.endm']
                body.append('%s %s' % (mac[k], c[0]))
                continue
        body += c
    i = body.index('.text')
    return body[:i + 1] + defs + body[i + 1:]


def generate(types, verbose=True):
    cfg.nwg = 16 * sum(t['cnt'] for t in types)
    out = []
    a = out.append
    a('; @launch grid=(%d,1,1) block=(256,1,1) lds=%d' % (cfg.nwg, LDS_BYTES()))
    a('.amdgcn_target "amdgcn-amd-amdhsa--gfx950"')
    a('.text')
    a('.globl %s' % NAME)
    a('.p2align 8')
    a('.type %s,@function' % NAME)
    a('%s:' % NAME)
    out += common_head([t['cnt'] for t in types])
    a('L_exit:')
    a('s_endpgm')
    first = 0
    for ti, t in enumerate(types):
        a('.p2align 6')
        a('L_type%d:' % ti)
        out += type_head(first)
        first += t['cnt']
        B = Builder(t['jobs'])
        lines = B.build()
        out += lines
        a('; ==== end of type %d' % ti)
        if cfg.stamps:
            out += stamp_tail()
        a('s_endpgm')
        if verbose:
            ov = B.P.overflow
            print('type %d: %d lines, mfma %d, est cycles %d, overflow %d in %d gaps, nops %d waits %d' % (
                ti, len(lines), B.P.nmfma, B.P.end_time, sum(x[1] for x in ov), len(ov), B.F.nops, B.F.nwaits), file=sys.stderr)
    out = dedupe(out)
    a = out.append
    a('.section .rodata,"a"')
    a('.p2align 6')
    a('.amdhsa_kernel %s' % NAME)
    a('  .amdhsa_next_free_vgpr 512')
    a('  .amdhsa_next_free_sgpr 102')
    a('  .amdhsa_accum_offset 256')
    a('  .amdhsa_group_segment_fixed_size 0')
    a('  .amdhsa_kernarg_size 56')
    a('  .amdhsa_user_sgpr_count 2')
    a('  .amdhsa_user_sgpr_kernarg_segment_ptr 1')
    a('  .amdhsa_system_sgpr_workgroup_id_x 1')
    a('.end_amdhsa_kernel')
    return '\n'.join(out) + '\n'


if __name__ == '__main__':
    one = make_types()
    types = [one(0, 4), one(6, 4), one(3, 3), one(4, 3), one(7, 3), one(2, 2), one(1, 2), one(5, 2)]
    if len(sys.argv) > 2:
        cfg.stamps = True
    txt = generate(types)
    open(sys.argv[1] if len(sys.argv) > 1 else 'out.s', 'w').write(txt)
```

```python
BIG = 1 << 40
GAP = 16
WS_D = 8
WS_COV = 6
WS_CWAR = 3


class Reg:
    def __init__(self, f, b, n=1):
        self.f, self.b, self.n = f, b, n

    def __str__(self):
        if self.n == 1:
            return '%s%d' % (self.f, self.b)
        return '%s[%d:%d]' % (self.f, self.b, self.b + self.n - 1)

    def names(self):
        return ['%s%d' % (self.f, i) for i in range(self.b, self.b + self.n)]

    def sub(self, off, n=1):
        assert 0 <= off and off + n <= self.n, (str(self), off, n)
        return Reg(self.f, self.b + off, n)


def V(b, n=1): return Reg('v', b, n)
def A(b, n=1): return Reg('a', b, n)
def S(b, n=1): return Reg('s', b, n)


def names(lst):
    out = []
    for x in lst:
        if isinstance(x, Reg):
            out += x.names()
        elif isinstance(x, list):
            out += names(x)
        else:
            out.append(x)
    return out


VEC = ('valu', 'trans', 'pk')
LDS = ('ds', 'dsw')
VMEM = ('dma', 'vld', 'vst')
NOEMIT = ('pseudo', 'mark')
COST = dict(valu=4, pk=4, trans=8, ds=4, dsw=8, dma=12, vld=12, vst=12, salu=4, bar=4, pseudo=0, mark=0, loop=8)

SPACE = dict(dsw=28, dma=56, vld=56, vst=56)
PATH = dict(dsw='lw', dma='ta', vld='ta', vst='ta')


class Op:
    def __init__(self, text, kind, rd=(), wr=(), rel=None, dl=None, srcc=(), sub=None, cost=None, lat=None):
        self.text, self.kind = text, kind
        self.rd, self.wr = names(rd), names(wr)
        self.srcc = names(srcc)
        self.rel, self.dl, self.sub = rel, dl, sub
        self.cost = COST.get(kind, 4) if cost is None else cost
        self.lat = lat
        self.silent = False
        self.space = SPACE.get(kind, 0)
        self.vmcap = None
        self.eager = False
        self.preds = {}
        self.succs = []
        self.time = None
        self.idx = None


def edge_lat(p, c, typ, reg):
    k = p.kind
    if reg == 'vmorder':
        return 4
    if typ == 'raw' or typ == 'waw':
        if p.lat is not None and typ == 'raw':
            return p.lat
        if k == 'mfma':
            if c.kind == 'mfma':
                return 0 if (set(c.srcc) == set(p.wr) or typ == 'waw') else 40
            return 40
        if k == 'trans':
            return 16 if c.kind == 'mfma' else 12
        if k in ('valu', 'pk'):
            if c.kind == 'mfma' or c.sub == 'perm':
                return 12
            if c.kind in LDS or c.kind in VMEM:
                return 12
            return 8 if typ == 'raw' else 4
        if k == 'ds':
            return 112
        if k == 'salu':
            return 12 if c.kind in VMEM else 4
        if k == 'bar':
            return 8
        if k in NOEMIT:
            return 0
        return 4
    if k == 'mfma' and c.kind in VEC and set(p.srcc) & set(c.wr):
        return 20
    if k == 'vst':
        return 12
    return 0


class Prog:
    def __init__(self):
        self.ops = []
        self.lastw = {}
        self.readers = {}
        self.nmfma = 0

    def add(self, op):
        op.idx = len(self.ops)

        def dep(p, typ, r):
            if p is op:
                return
            l = edge_lat(p, op, typ, r)
            if p not in op.preds or op.preds[p] < l:
                op.preds[p] = l
        for r in op.rd:
            if r in self.lastw:
                dep(self.lastw[r], 'raw', r)
        for r in op.wr:
            if r in self.lastw:
                dep(self.lastw[r], 'waw', r)
            for p in self.readers.get(r, ()):
                dep(p, 'war', r)
        for r in op.rd:
            self.readers.setdefault(r, []).append(op)
        for r in op.wr:
            self.lastw[r] = op
            self.readers[r] = []
        if op.kind == 'mfma':
            op.m = self.nmfma
            self.nmfma += 1
        self.ops.append(op)
        return op

    def schedule(self):
        ops = self.ops
        for o in ops:
            for p in o.preds:
                p.succs.append(o)
        endt = GAP * (self.nmfma + 1)
        for o in reversed(ops):
            if o.kind == 'mfma':
                o.D = GAP * o.m
                continue
            d = endt + 4 * o.idx
            for s in o.succs:
                d = min(d, s.D - max(s.preds[o], 4 if o.cost else 0))
            if o.dl is not None:
                d = min(d, GAP * o.dl + 8)
            o.D = d
        mf = [o for o in ops if o.kind == 'mfma']
        npend = {o: len(o.preds) for o in ops}
        avail = set(o for o in ops if npend[o] == 0 and o.kind != 'mfma')
        out = []
        st = dict(t=0, lastkind=None, pos=0, tm=-BIG, lw=-BIG, ta=-BIG)
        key = lambda o: (o.D, o.idx)

        def ready_time(o):
            r = -BIG
            for p, l in o.preds.items():
                x = p.time + l
                if p.kind == 'mfma' and l >= 20 and o.kind not in NOEMIT:
                    short = (WS_D if l > 20 else WS_CWAR) - (st['pos'] - p.pos - 1)
                    if short > 0:
                        x = max(x, st['t'] + 4 * short)
                r = max(r, x)
            if o.kind == 'pk':
                r = max(r, st['tm'] + 24)
            if o.kind in PATH:
                r = max(r, st[PATH[o.kind]])
            return r

        def place(o, t):
            o.time = t
            o.pos = st['pos']
            if o.kind not in NOEMIT:
                st['pos'] += 1
            if o.kind in PATH:
                st[PATH[o.kind]] = t + o.space
            out.append(o)
            avail.discard(o)
            for s in o.succs:
                npend[s] -= 1
                if npend[s] == 0 and s.kind != 'mfma':
                    avail.add(s)

        def penalty(o):
            lk = st['lastkind']
            if o.kind in LDS + VMEM and lk in VEC:
                return 8
            if o.kind in VMEM and lk == 'salu':
                return 8
            return 0

        def emit(o):
            t = max(st['t'] + penalty(o), ready_time(o))
            place(o, t)
            st['t'] = t + o.cost
            if o.kind not in NOEMIT:
                st['lastkind'] = o.kind

        def needed_set(targets):
            need = set()
            stack = [p for t in targets for p in t.preds if p.time is None]
            while stack:
                p = stack.pop()
                if p in need:
                    continue
                assert p.kind != 'mfma', 'backbone order violates dependences: needs %s' % p.text
                need.add(p)
                stack += [q for q in p.preds if q.time is None]
            return need

        def released(o, g):
            return o.rel is None or o.rel <= g

        def forced(need, g):
            while need:
                t = st['t']
                c = [o for o in avail if o in need]
                rdy = [o for o in c if ready_time(o) <= t + penalty(o)]
                eg = [o for o in avail if o.eager and released(o, g) and ready_time(o) <= t + penalty(o)]
                if eg:
                    o = min(eg, key=key)
                elif rdy:
                    o = min(rdy, key=lambda o: (o.D + 2 * penalty(o), o.idx))
                else:
                    nxt = min(ready_time(o) for o in c)
                    oth = [o for o in avail if o not in need and released(o, g) and o.kind not in ('bar', 'loop', 'pseudo')
                           and ready_time(o) <= t and t + penalty(o) + o.cost <= nxt + 4]
                    if oth:
                        o = min(oth, key=key)
                    else:
                        o = min(c, key=lambda o: (ready_time(o), o.D, o.idx))
                emit(o)
                need.discard(o)

        for o in ops:
            if o.silent:
                place(o, -1000)
        self.overflow = []
        for m, mo in enumerate(mf):
            tm = st['tm']
            forced(needed_set([mo]), m - 1)
            rt = ready_time(mo)
            while rt > st['t'] + 3:
                oth = [o for o in avail if released(o, m - 1) and o.kind not in ('bar', 'loop', 'pseudo')
                       and ready_time(o) <= st['t'] and st['t'] + penalty(o) + o.cost <= max(rt, tm + GAP)]
                if not oth:
                    break
                emit(min(oth, key=key))
            t = max(st['t'], tm + GAP, rt)
            if m > 0 and t > tm + GAP:
                self.overflow.append((m, t - tm - GAP))
            place(mo, t)
            tm = st['tm'] = t
            st['lastkind'] = 'mfma'
            end = tm + GAP
            st['t'] = tm + 4

            def cands(kinds, slack=0):
                return [o for o in avail if o.kind in kinds and released(o, m) and ready_time(o) <= st['t'] + slack]
            lp = cands(('loop',), BIG)
            if lp:
                place(lp[0], st['t'])
                st['t'] = end + 4
                continue
            shadow = False
            while True:
                c = cands(NOEMIT, 4)
                if not c:
                    break
                o = min(c, key=key)
                if o.kind == 'pseudo':
                    shadow = True
                place(o, st['t'])
            br = cands(('bar',), 4)
            vm = cands(VMEM, 4) if not (br or shadow) else []
            if br:
                st['t'] = tm + 8
                emit(br[0])
                st['t'] = end
                continue
            if vm:
                o = min(vm, key=key)
                urgent = [x for x in cands(('trans', 'valu', 'ds'), 4) if x.D < o.D and x.D <= GAP * (m + 1)]
                if not urgent:
                    st['t'] = tm + 8
                    emit(o)
                    continue
            if not shadow:
                c = [o for o in cands(('salu',)) if o.cost <= 4 or o.D <= GAP * (m + 4)]
                if c:
                    o = min(c, key=key)
                    place(o, st['t'])
                    st['t'] += o.cost
            st['t'] = max(st['t'], tm + 8)
            room = end - st['t']
            tr = [o for o in cands(('trans', 'dsw')) if o.cost <= room]
            ds = sorted(cands(('ds',)), key=key) if room >= 4 else []
            va = sorted(cands(('valu',), 4), key=key) if room >= 4 else []
            us = sorted([o for o in cands(("salu",)) if o.D <= GAP * (m + 2) and o.cost <= room], key=key)
            small = sorted(ds[:2] + va[:2] + us[:1], key=key)[:room // 4]
            pick_tr = False
            if tr:
                bt = min(tr, key=key)
                if not small:
                    pick_tr = True
                elif len(small) < 2:
                    pick_tr = bt.D <= small[0].D or small[0].D > GAP * (m + 2)
                else:
                    pick_tr = bt.D <= small[0].D
            if pick_tr:
                emit(bt)
            else:
                small.sort(key=lambda o: (o.kind != 'ds', ready_time(o) > st['t'], o.D, o.idx))
                for o in small:
                    if max(st['t'], ready_time(o)) + o.cost <= end:
                        emit(o)
                if st['t'] + 4 <= end:
                    c = [o for o in cands(('valu',)) if st['t'] + o.cost <= end]
                    if c:
                        emit(min(c, key=key))
        rest = set(o for o in ops if o.time is None)
        forced(rest, BIG)
        self.end_time = st['t']
        self.out = out
        return out


class Finalizer:
    def __init__(self):
        self.lines = []
        self.lg = []
        self.vm = []
        self.hist = []
        self.pos = 0
        self.nops = 0
        self.nwaits = 0
        self.capped = set()

    def _need(self, op):
        touched = set(op.rd) | set(op.wr)
        nl = nv = None
        for i, w in enumerate(self.lg):
            if touched & w:
                nl = len(self.lg) - i - 1
        for i, w in enumerate(self.vm):
            if touched & w:
                nv = len(self.vm) - i - 1
        if op.vmcap is not None and id(op) not in self.capped:
            nv = op.vmcap if nv is None else min(nv, op.vmcap)
            nl = 0
            self.capped.add(id(op))
        return nl, nv

    def _wait(self, nl, nv):
        parts = []
        if nv is not None:
            nv = min(nv, 63)
            parts.append('vmcnt(%d)' % nv)
            del self.vm[:max(0, len(self.vm) - nv)]
        if nl is not None:
            nl = min(nl, 15)
            parts.append('lgkmcnt(%d)' % nl)
            del self.lg[:max(0, len(self.lg) - nl)]
        self.lines.append('s_waitcnt ' + ' '.join(parts))
        self.pos += 1
        self.nwaits += 1

    def _hazard(self, c):
        need = 0
        rd, wr = set(c.rd), set(c.wr)
        for p, pp in reversed(self.hist):
            dist = self.pos - pp - 1
            if dist >= 20:
                break
            pw = set(p.wr)
            ws = 0
            if p.kind in VEC:
                if c.kind == 'mfma' and pw & rd:
                    ws = max(ws, 2)
                if p.kind == 'trans' and c.kind in VEC and pw & rd:
                    ws = max(ws, 1)
                if c.sub == 'perm' and pw & (rd | wr):
                    ws = max(ws, 2)
                if c.sub == 'rdlane' and pw & rd:
                    ws = max(ws, 1)
                sg = set(x for x in pw if isinstance(x, str) and (x[0] == 's' or x == 'vcc'))
                if sg & rd:
                    if c.kind in VEC or c.kind == 'salu':
                        ws = max(ws, 2)
                    elif c.kind in VMEM:
                        ws = max(ws, 5)
            if p.kind == 'mfma':
                if c.kind == 'mfma':
                    cc = set(c.srcc)
                    if pw & (rd - cc):
                        ws = max(ws, WS_D)
                    if pw & cc and cc != pw:
                        ws = max(ws, WS_COV)
                    if pw & wr and wr != pw:
                        ws = max(ws, WS_D)
                elif pw & (rd | wr):
                    ws = max(ws, WS_D)
                if c.kind in VEC and set(p.srcc) & wr:
                    ws = max(ws, WS_CWAR)
            if p.kind == 'salu' and 'm0' in pw and c.kind == 'dma':
                ws = max(ws, 1)
            if p.kind == 'vst' and set(p.rd) & wr - {'vmorder'}:
                ws = max(ws, 2)
            need = max(need, ws - dist)
        return need

    def run(self, ops):
        n = len(ops)
        for i, op in enumerate(ops):
            if op.kind in ('mark', 'loop'):
                self.lines.append(op.text)
                continue
            if op.silent:
                if op.kind in VMEM:
                    self.vm.append(set(op.wr) - {'vmorder'})
                continue
            nl, nv = self._need(op)
            if nl is not None or nv is not None:
                self._wait(nl, nv)
            if op.kind != 'pseudo':
                h = self._hazard(op)
                if h > 0:
                    self.lines.append('s_nop %d' % (h - 1))
                    self.pos += h
                    self.nops += 1
                tl = op.text.split('\n')
                self.lines += tl
                self.pos += len(tl) - 1
                self.hist.append((op, self.pos))
                if len(self.hist) > 64:
                    del self.hist[:32]
                self.pos += 1
                if op.kind in LDS:
                    self.lg.append(set(op.wr) if op.kind == 'ds' else set())
                elif op.kind in VMEM:
                    self.vm.append(set(op.wr) - {'vmorder'})
            if op.kind == 'mfma':
                nl = nv = None
                j = i + 1
                while j < n:
                    o = ops[j]
                    if o.time > op.time + GAP + 8:
                        break
                    if o.kind not in ('mark', 'loop'):
                        a, b = self._need(o)
                        if a is not None:
                            nl = a if nl is None else min(nl, a)
                        if b is not None:
                            nv = b if nv is None else min(nv, b)
                    if o.kind == 'mfma':
                        break
                    j += 1
                if nl is not None or nv is not None:
                    self._wait(nl, nv)
        return self.lines
```

```python
import sys, math, struct
from sched16 import *

NAME = 'standalone__varlen_attn_packed__ragged_kernel'
CU = [0, 992, 1451, 1933, 2583, 3189, 3578, 4512, 5082]
LEN = [CU[i + 1] - CU[i] for i in range(8)]
TOT = CU[-1]
ROW = 4096
MF = 'v_mfma_f32_16x16x32_bf16'


class Cfg:
    stamps = 0
    ld_flags = ' nt'
    q_flags = ' nt'
    store_flags = ' nt'
    fold = 1
    pf = 2
    pf_flags = ''
    pf2_flags = ''
    only = -1
    k0 = 3
    compact = 1
    hmap = 0
    fair = 1
cfg = Cfg()


def f2u(x):
    return struct.unpack('<I', struct.pack('<f', x))[0]


CSCALE = f2u(math.log2(math.e) / math.sqrt(128.0))
LTHR = f2u(2.0 ** 40)

TMP = V(0, 12)
vHM = V(12, 2)
vQF, vQL = V(14), V(15)
SSET = [V(16, 8), V(24, 8)]
PSET = [V(32, 4), V(36, 4)]
NMSET = [V(40 + 4 * i, 4) for i in range(4)]
ONES = V(56, 4)
vKA = V(60, 4)
vVA = V(64, 2)
vDK = V(66, 2)
vDV = V(68, 2)
vOW = V(70)
vG = V(71)
vQO = V(72, 4)
RCP = V(76, 4)
RAW2 = V(80, 48)
OSET = [V(128 + 32 * i, 32) for i in range(4)]
KF = [A(0, 32), A(32, 32)]
VF = [A(64, 32), A(96, 32)]
QSET = [A(128 + 16 * i, 16) for i in range(7)]
LSET = [A(240 + 4 * i, 4) for i in range(4)]

sW, sSUB = S(12), S(46)
sC = S(14, 2)
sKS, sVS = S(16, 4), S(20, 4)
def sQS(j): return S(24 + 8 * j, 4)
def sOS(j): return S(28 + 8 * j, 4)
sOFF = S(40)
sCUR, sPB, sMASK = S(41), S(42), S(43)
def sQROW(j): return S(44 + j)
sT = [S(48 + i) for i in range(6)]
sFLAG, sTHR, sCNT, sEV = S(54), S(55), S(56), S(57)
sINC, sSPEC = S(58, 2), S(60, 2)
sWB = S(47)
sDBG = S(64, 4)

VBASE = 0x10000
STG = 0x20000
STG_W = 4352
LDS_BYTES = STG + 4 * STG_W
GRAY = [0, 0x4000, 0xC000, 0x8000]


class Job:
    def __init__(self, seq, b, q0, qstride=0):
        self.seq, self.b, self.q0, self.qstride = seq, b, q0, qstride
        self.L = LEN[seq]
        self.n = (self.L + 31) // 32
        self.rem = self.L - 32 * (self.n - 1)


class Builder:
    def __init__(self, jobs):
        self.jobs = jobs
        self.P = Prog()
        self.tmpi = self.sti = self.tmi = 0
        self.force, self.fence = [], False
        qi = 0
        for j, job in enumerate(jobs):
            job.Q = QSET[qi:qi + job.b]
            qi += job.b
            sh = 0 if j == 0 else jobs[0].b % 4
            job.slot = [(x + sh) % 4 for x in range(job.b)]
            if j == 0:
                job.raw = [OSET[job.slot[x]].sub(0, 16) for x in range(job.b)]
            else:
                job.raw = [RAW2.sub(16 * x, 16) for x in range(job.b)]

    def add(self, *a, **k):
        return self.P.add(Op(*a, **k))

    def valu(self, text, rd, wr, **k):
        return self.add(text, 'valu', rd, wr, **k)

    def salu(self, text, rd, wr, **k):
        return self.add(text, 'salu', rd, wr, **k)

    def tmp2(self):
        r = TMP.sub(2 * (self.tmpi % 4), 2)
        self.tmpi += 1
        return r

    def tmpm(self):
        r = TMP.sub(8 + 2 * (self.tmi % 2), 2)
        self.tmi += 1
        return r

    def chain(self, ops):
        for p, o in zip(ops, ops[1:]):
            o.preds[p] = max(o.preds.get(p, 0), p.space)

    def stmp(self):
        r = sT[self.sti % len(sT)]
        self.sti += 1
        return r

    def stamp(self, i, after=(), rel=None, chain=None):
        if cfg.stamps == 1 or (cfg.stamps == 2 and i < 4):
            r = S(72 + 2 * i, 2)
            self.add('s_memtime %s' % r, 'salu', list(after), [r] + ([chain] if chain else []), rel=rel, dl=rel if rel is not None else -100)

    def job_setup(self, j, rel=None):
        job = self.jobs[j]
        nrec = (CU[job.seq + 1] - 1) * ROW + 256
        q = sQROW(j)
        assert j > 0
        self.salu('s_mul_i32 %s, %s, 0x%x' % (q, sW, 16 * job.b * ROW), [sW], [q], rel=rel)
        if job.qstride:
            t = self.stmp()
            self.salu('s_mul_i32 %s, %s, 0x%x' % (t, sSUB, job.qstride * ROW), [sSUB], [t], rel=rel)
            self.salu('s_add_u32 %s, %s, %s' % (q, q, t), [q, t], [q], rel=rel)
        self.salu('s_add_u32 %s, %s, 0x%x' % (q, q, (CU[job.seq] + job.q0) * ROW), [q], [q], rel=rel)
        for d, d0 in ((sQS(j), sQS(0)), (sOS(j), sOS(0))):
            if j:
                self.salu('s_mov_b64 %s, %s' % (d.sub(0, 2), d0.sub(0, 2)), [d0.sub(0, 2)], [d.sub(0, 2)], rel=rel)
            self.salu('s_mov_b32 %s, 0x%x' % (d.sub(2), nrec), [], [d.sub(2)], rel=rel)
            self.salu('s_mov_b32 %s, 0x20000' % d.sub(3), [], [d.sub(3)], rel=rel)

    def job_masks(self, j, rel=None):
        job = self.jobs[j]
        r = job.rem % 16
        job.G = [(r + 3) // 4, r // 4]
        if r == 0:
            return
        for k in range(2):
            if 0 < job.G[k] < 4 and (k == 0 or job.G[0] != job.G[1]):
                h = vHM.sub(k)
                self.valu('v_subrev_u32 %s, %d, %s' % (h, job.G[k], vG), [vG], [h], rel=rel)
                self.valu('v_ashrrev_i32 %s, 31, %s' % (h, h), [h], [h], rel=rel)
                self.valu('v_not_b32 %s, %s' % (h, h), [h], [h], rel=rel)
                self.valu('v_and_b32 %s, 0xff800000, %s' % (h, h), [h], [h], rel=rel)

    def rowoff(self, g):
        j, i = self.blocks[g]
        job = self.jobs[j]
        return (CU[job.seq] + (0 if i == 0 else job.rem + 32 * (i - 1))) * ROW

    def slot(self, g):
        v = g + self.par
        return GRAY[(v >> 1) % 4] + (v & 1) * 8192

    def dma_off(self, g, rel, mode):
        if mode == 'static':
            self.salu('s_mov_b32 %s, 0x%x' % (sOFF, self.rowoff(g)), [], [sOFF], rel=rel, dl=rel)
        elif mode == 'add':
            self.salu('s_add_u32 %s, %s, 0x%x' % (sOFF, sOFF, self.rowoff(g) - self.rowoff(g - 1)), [sOFF], [sOFF], rel=rel, dl=rel)
        else:
            self.salu('s_sub_u32 %s, %s, 1\ns_cselect_b64 %s, %s, %s' % (sEV, sEV, sINC, sSPEC, sINC), [sEV, sINC, sSPEC], [sEV, sINC],
                      rel=rel - 2, dl=rel - 1, cost=8)
            self.salu('s_add_u32 %s, %s, %s' % (sOFF, sOFF, sINC.sub(0)), [sOFF, sINC.sub(0)], [sOFF], rel=rel, dl=rel)
            self.salu('s_mov_b32 %s, %s' % (sINC.sub(0), sINC.sub(1)), [sINC.sub(1)], [sINC.sub(0)], rel=rel + 4, dl=rel + 6)
            self.salu('s_mov_b32 %s, 0x%x' % (sINC.sub(1), 32 * ROW), [], [sINC.sub(1)], rel=rel + 5, dl=rel + 7)

    def event_init(self, gfirst, rel):
        g2 = self.jobs[0].n
        self.salu('s_mov_b32 %s, %d' % (sEV, g2 - gfirst), [], [sEV], rel=rel)
        for k in range(2):
            self.salu('s_mov_b32 %s, 0x%x' % (sINC.sub(k), 32 * ROW), [], [sINC.sub(k)], rel=rel)
            self.salu('s_mov_b32 %s, 0x%x' % (sSPEC.sub(k), (self.rowoff(g2 + k) - self.rowoff(g2 + k - 1)) & 0xffffffff), [], [sSPEC.sub(k)], rel=rel)

    def dma(self, which, g, rels, static=False, after=(), silent=False):
        base = VBASE if which == 'V' else 0
        n0 = len(self.P.ops)
        if static:
            self.salu('s_add_u32 m0, %s, 0x%x' % (sWB, base + self.slot(g)), [sWB], ['m0'], rel=rels[0], dl=rels[0])
        else:
            assert self.slot(g) & 0xc000 == self.prev
            self.salu('s_add_u32 m0, %s, 0x%x' % (sPB, base + (self.slot(g) & 0x2000)), [sPB], ['m0'], rel=rels[0], dl=rels[0])
        srd, vo = (sKS, vDK) if which == 'K' else (sVS, vDV)
        for t in range(2):
            self.add('buffer_load_dwordx4 %s, %s, %s offen%s%s lds' % (vo.sub(t), srd, sOFF, ' offset:1024' if t else '', cfg.ld_flags),
                     'dma', [vo.sub(t), srd, sOFF, 'm0', ('free', which, self.slot(g)), 'vmorder'] + list(after),
                     [('dma', which, g, t), 'vmorder'], rel=rels[1 + t], dl=rels[1 + t], lat=4)
        for o in self.P.ops[n0:]:
            o.silent = silent

    def barrier(self, pub, free, rel, vmcap=None, after=()):
        rd, wr = ['barseq'] + list(after), ['barseq']
        for which, g in pub:
            rd += [('dma', which, g, 0), ('dma', which, g, 1)]
            wr += [('pub', which, g)]
        for which, g in free:
            rd += self.rdtok[(which, g)]
            wr += [('free', which, self.slot(g))]
        self.add('s_barrier', 'bar', rd, wr, rel=rel, dl=rel).vmcap = vmcap

    def ring_advance(self, rel):
        self.prev = self.cur
        self.cur = GRAY[(GRAY.index(self.cur) + 1) % 4]
        self.salu('s_mov_b32 %s, %s' % (sPB, sCUR), [sCUR], [sPB], rel=rel, dl=rel)
        self.salu('s_xor_b32 %s, %s, %s' % (sCUR, sCUR, sMASK), [sCUR, sMASK], [sCUR], rel=rel, dl=rel)
        for r in [vKA.sub(i) for i in range(4)] + [vVA.sub(i) for i in range(2)]:
            self.valu('v_xor_b32 %s, %s, %s' % (r, sMASK, r), [r, sMASK], [r])
        self.salu('s_xor_b32 %s, %s, 0xc000' % (sMASK, sMASK), [sMASK], [sMASK])

    def rdoff(self, g):
        assert self.cur == 0 or self.slot(g) & 0xc000 == self.cur
        return self.slot(g) - self.cur

    def read_k(self, g, relf):
        j, i = self.blocks[g]
        nsub = 1 if (i == 0 and self.jobs[j].rem <= 16) else 2
        toks = []
        for u in range(nsub):
            for s in range(4):
                f = 4 * u + s
                d = KF[g & 1].sub(4 * f, 4)
                tok = ('rd', 'K', g, f)
                toks.append(tok)
                r = relf(f)
                self.add('ds_read_b128 %s, %s offset:%d' % (d, vKA.sub(s), self.rdoff(g) + u * 4096), 'ds',
                         [vKA.sub(s), ('pub', 'K', g)], [d, tok], rel=r, dl=None if r is None else r + 2)
        self.rdtok[('K', g)] = toks

    def read_v(self, g, relf):
        toks = []
        for db in range(8):
            for jj in range(2):
                n = 2 * db + jj
                d = VF[g & 1].sub(4 * db + 2 * jj, 2)
                tok = ('rd', 'V', g, n)
                toks.append(tok)
                r = relf(n)
                self.add('ds_read_b64_tr_b16 %s, %s offset:%d' % (d, vVA.sub(db & 1), self.rdoff(g) + jj * 4096 + (db >> 1) * 256),
                         'ds', [vVA.sub(db & 1), ('pub', 'V', g)], [d, tok], rel=r, dl=None if r is None else r + 2)
        self.rdtok[('V', g)] = toks

    def q_load(self, j, x, rel=None, after=(), silent=False):
        job = self.jobs[j]
        n0 = len(self.P.ops)
        so = self.stmp()
        self.salu('s_add_u32 %s, %s, 0x%x' % (so, sQROW(j), 16 * x * ROW), [sQROW(j)], [so], rel=None if rel is None else rel(0) - 2)
        for t in range(4):
            T = job.raw[x].sub(4 * t, 4)
            r = None if rel is None else rel(t)
            self.add('buffer_load_dwordx4 %s, %s, %s, %s offen%s' % (T, vQO.sub(t), sQS(j), so, cfg.q_flags), 'vld',
                     [vQO.sub(t), sQS(j), so, 'vmorder'] + list(after), [T, 'vmorder'], rel=r, dl=r, lat=4)
        for o in self.P.ops[n0:]:
            o.silent = silent

    def q_conv(self, j, x, rel=None, after=()):
        job = self.jobs[j]
        after = list(after)
        for t in range(4):
            T = job.raw[x].sub(4 * t, 4)
            for e in range(4):
                y = T.sub(e)
                p = self.tmp2()
                self.valu('v_lshlrev_b32 %s, 16, %s' % (p.sub(0), y), [y] + after, [p.sub(0)], rel=rel)
                self.valu('v_and_b32 %s, 0xffff0000, %s' % (p.sub(1), y), [y] + after, [p.sub(1)], rel=rel)
                self.add('v_pk_mul_f32 %s, %s, %s' % (p, p, sC), 'pk', [p, sC], [p], rel=rel)
                self.force.append(self.valu('v_cvt_pk_bf16_f32 %s, %s, %s' % (y, p.sub(0), p.sub(1)), [p], [y], rel=rel))
        self.add('', 'mark', [], ['stgx']).eager = True
        ids = []
        n0 = len(self.P.ops)
        for t in range(4):
            T = job.raw[x].sub(4 * t, 4)
            ids.append(('stg', j, x, 'q', t))
            self.add('ds_write_b128 %s, %s offset:%d' % (vQL, T, t * 4 * 272), 'dsw', [vQL, T, 'stgx'], [ids[-1]]).space = 52
        self.chain(self.P.ops[-4:])
        for s in range(4):
            d = job.Q[x].sub(4 * s, 4)
            self.add('ds_read_b128 %s, %s offset:%d' % (d, vQF, s * 64), 'ds', [vQF, 'stgx'] + ids, [d], lat=140)
        for o in self.P.ops[n0:]:
            o.eager = True

    def mfma(self, d, a, b, c):
        o = self.add('%s %s, %s, %s, %s' % (MF, d, a, b, c if c else '0'), 'mfma', [a, b] + ([c] if c else []), [d],
                     srcc=[c] if c else [])
        if self.fence:
            for p in self.force:
                o.preds.setdefault(p, 4)
            self.force = []
            self.fence = False

    def qk(self, t):
        job = self.jobs[t['j']]
        for u in range(t['nsub']):
            d = SSET[t['h'] % 2].sub(4 * u, 4)
            for s in range(4):
                c = d if s else (None if t['first'] else NMSET[t['slot']])
                self.mfma(d, KF[t['g'] & 1].sub(16 * u + 4 * s, 4), job.Q[t['x']].sub(4 * s, 4), c)

    def pv(self, t):
        Pr = PSET[t['h'] % 2]
        L = LSET[t['slot']]
        self.fence = True
        if t['last']:
            self.mfma(L, ONES, Pr, None if t['first'] else L)
        for db in range(8):
            d = OSET[t['slot']].sub(4 * db, 4)
            self.mfma(d, VF[t['g'] & 1].sub(4 * db, 4), Pr, None if t['first'] else d)
        if not t['last']:
            self.mfma(L, ONES, Pr, None if t['first'] else L)

    def sm(self, t):
        job = self.jobs[t['j']]
        Sr, Pr, NM = SSET[t['h'] % 2], PSET[t['h'] % 2], NMSET[t['slot']]
        used = list(range(8))
        if t['first']:
            nr = 4 * t['nsub']
            tt = self.tmpm()
            a, b = tt.sub(0), tt.sub(1)
            self.valu('v_max3_f32 %s, %s, %s, %s' % (a, Sr.sub(0), Sr.sub(1), Sr.sub(2)), [Sr.sub(0, 3)], [a])
            if nr == 4:
                self.valu('v_max_f32 %s, %s, %s' % (a, a, Sr.sub(3)), [a, Sr.sub(3)], [a])
            else:
                self.valu('v_max3_f32 %s, %s, %s, %s' % (b, Sr.sub(4), Sr.sub(5), Sr.sub(6)), [Sr.sub(4, 3)], [b])
                self.valu('v_max3_f32 %s, %s, %s, %s' % (a, a, Sr.sub(3), Sr.sub(7)), [a, Sr.sub(3), Sr.sub(7)], [a])
                self.valu('v_max_f32 %s, %s, %s' % (a, a, b), [tt], [a])
            self.valu('v_mov_b32 %s, %s' % (b, a), [a], [b])
            self.valu('v_permlane32_swap_b32 %s, %s' % (a, b), [tt], [tt], sub='perm')
            self.valu('v_max_f32 %s, %s, %s' % (a, a, b), [tt], [a])
            self.valu('v_mov_b32 %s, %s' % (b, a), [a], [b])
            self.valu('v_permlane16_swap_b32 %s, %s' % (a, b), [tt], [tt], sub='perm')
            self.valu('v_min_f32_e64 %s, -%s, -%s' % (NM.sub(0), a, b), [tt], [NM.sub(0)])
            r16 = job.rem % 16
            up = t['nsub'] - 1 if r16 else -1
            src, used = {}, []
            made = {}
            for r in range(nr):
                if r // 4 != up:
                    src[r] = NM.sub(0)
                else:
                    k = 0 if (r % 4) < (r16 % 4) or job.G[0] == job.G[1] else 1
                    if job.G[k] == 0:
                        continue
                    if job.G[k] == 4:
                        src[r] = NM.sub(0)
                    else:
                        if k not in made:
                            made[k] = tt.sub(k)
                            self.valu('v_add_f32 %s, %s, %s' % (made[k], NM.sub(0), vHM.sub(k)), [NM.sub(0), vHM.sub(k)], [made[k]])
                        src[r] = made[k]
                used.append(r)
            for r in used:
                y = Sr.sub(r)
                self.valu('v_add_f32 %s, %s, %s' % (y, src[r], y), [y, src[r]], [y])
            for r in range(1, 4):
                self.valu('v_mov_b32 %s, %s' % (NM.sub(r), NM.sub(0)), [NM.sub(0)], [NM.sub(r)])
        for r in range(8):
            y = Sr.sub(r)
            if r in used:
                self.add('v_exp_f32 %s, %s' % (y, y), 'trans', [y], [y])
            if r % 2 == 1:
                p, lo = Pr.sub(r // 2), Sr.sub(r - 1)
                if r in used:
                    self.valu('v_cvt_pk_bf16_f32 %s, %s, %s' % (p, lo, y), [lo, y], [p])
                elif r - 1 in used:
                    self.valu('v_cvt_pk_bf16_f32 %s, %s, 0' % (p, lo), [lo], [p])
                else:
                    self.valu('v_mov_b32 %s, 0' % p, [], [p], rel=self.start[t['h']])

    def epilogue(self, t):
        j, x, sl = t['j'], t['x'], t['slot']
        job = self.jobs[j]
        O, rc, L = OSET[sl], RCP.sub(sl), LSET[sl].sub(0)
        self.valu('v_accvgpr_read_b32 %s, %s' % (rc, L), [L], [rc])
        self.valu('v_cmp_nge_f32 vcc, %s, %s' % (sTHR, rc), [sTHR, rc], ['vcc'])
        st = self.stmp()
        self.salu('s_cmp_lg_u64 vcc, 0\ns_cselect_b32 %s, %d, 0' % (st, 1 << (4 * j + x)), ['vcc'], [st], cost=8)
        self.salu('s_or_b32 %s, %s, %s' % (sFLAG, sFLAG, st), [sFLAG, st], [sFLAG])
        self.add('v_rcp_f32 %s, %s' % (rc, rc), 'trans', [rc], [rc])
        rp, h = V(rc.b & ~1, 2), rc.b & 1
        dl = self.start[t['h'] + 2]
        for db in range(8):
            src = O.sub(4 * db, 4)
            for e in range(2):
                y = src.sub(2 * e, 2)
                self.force.append(self.add('v_pk_mul_f32 %s, %s, %s op_sel:[0,%d] op_sel_hi:[1,%d]' % (y, y, rp, h, h), 'pk', [y, rc], [y]))
            for e in range(2):
                y = src.sub(2 * e, 2)
                o = self.valu('v_cvt_pk_bf16_f32 %s, %s, %s' % (src.sub(e), y.sub(0), y.sub(1)), [y], [src.sub(e)])
                if db < 2:
                    self.force.append(o)
        self.add('', 'mark', [], ['stgx']).eager = True
        ids = []
        n0 = len(self.P.ops)
        for db in range(8):
            ids.append(('stg', j, x, 'o', db))
            self.add('ds_write_b64 %s, %s offset:%d' % (vOW, O.sub(4 * db, 2), db * 32), 'dsw', [vOW, O.sub(4 * db, 2), 'stgx'], [ids[-1]],
                     dl=dl + 2 * db)
        self.chain(self.P.ops[-8:])
        so = self.stmp()
        self.salu('s_add_u32 %s, %s, 0x%x' % (so, sQROW(j), 16 * x * ROW), [sQROW(j)] + ids[:1], [so])
        for tt in range(4):
            d = job.Q[x].sub(4 * tt, 4)
            self.add('ds_read_b128 %s, %s offset:%d' % (d, vQL, tt * 4 * 272), 'ds', [vQL, 'stgx'] + ids, [d], dl=dl + 16, lat=140)
        for tt in range(4):
            d = job.Q[x].sub(4 * tt, 4)
            self.add('buffer_store_dwordx4 %s, %s, %s, %s offen%s' % (d, vQO.sub(tt), sOS(j), so, cfg.store_flags), 'vst',
                     [d, vQO.sub(tt), sOS(j), so], [], lat=4, dl=dl + 26 + 4 * tt)
        for o in self.P.ops[n0:]:
            o.eager = True

    def build(self):
        jobs = self.jobs
        self.blocks = [(j, i) for j, job in enumerate(jobs) for i in range(job.n)]
        G = len(self.blocks)
        self.rdtok = {}
        tiles, step0 = [], {}
        for g, (j, i) in enumerate(self.blocks):
            job = jobs[j]
            step0[g] = len(tiles)
            for x in range(job.b):
                tiles.append(dict(j=j, x=x, g=g, i=i, h=len(tiles), first=(i == 0), last=(i == job.n - 1),
                                  nsub=(1 if (i == 0 and job.rem <= 16) else 2), slot=job.slot[x]))
        H = len(tiles)
        step0[G] = H
        T = lambda h: tiles[h] if 0 <= h < H else None
        start, m = {}, 0
        for h in range(-1, H + 3):
            start[h] = m
            if T(h + 1): m += 4 * T(h + 1)['nsub']
            if T(h - 1): m += 9
        self.start = start
        N3 = [None] * 3
        b0 = jobs[0].b
        self.par = par = G & 1
        self.cur, self.prev = 0, None
        two = len(jobs) > 1

        self.dma('K', 0, N3, static=True, silent=True)
        self.q_load(0, 0, silent=True)
        self.dma('V', 0, N3, static=True, silent=True)
        self.q_load(0, 1, silent=True)
        n0 = len(self.P.ops)
        for x in range(2, b0):
            if cfg.fair:
                self.add('s_barrier', 'bar', ['barseq', 'vmorder'], ['barseq', 'vmorder'])
            self.q_load(0, x)
        if cfg.fair:
            self.add('s_barrier', 'bar', ['barseq', 'vmorder'], ['barseq', 'vmorder'])
        self.dma_off(1, None, 'static')
        self.dma('K', 1, N3, static=True)
        self.dma('V', 1, N3, static=True)
        if cfg.pf == 2:
            self.add('global_load_dword v127, v126, s[68:69]%s' % cfg.pf2_flags, 'vld', ['vmorder'], [V(127), 'vmorder'])
        for o in self.P.ops[n0:]:
            o.space = 0
        self.add('', 'mark', ['vmorder'], ['issued'])
        self.stamp(1, ['issued'], chain='issued')
        self.job_masks(0)
        for j in range(1, len(jobs)):
            self.job_setup(j)
        for x in range(b0):
            if x == 0:
                self.stamp(2, [jobs[0].raw[0].sub(0, 4), 'issued'], chain='issued')
            self.q_conv(0, x, after=['issued'] + ([('conv', x - 1)] if x else []))
            self.add('', 'mark', [jobs[0].raw[x]], [('conv', x)]).eager = True
            self.force = []
            if x == 0:
                self.barrier([('K', 0), ('V', 0)], [], None, after=[('conv', 0)])
                self.read_k(0, lambda f: None)
                self.read_v(0, lambda n: None)
            if x == 1:
                self.dma_off(2, None, 'static')
                self.dma('K', 2, N3, static=True, after=[('conv', 1)])
                self.dma('V', 2, N3, static=True)
        nxt = 3
        nfree = 8 - par
        pubd = 1
        evmode = False
        conv_at = {}
        if two:
            for x in range(jobs[1].b):
                conv_at[step0[jobs[0].n] + x - 3] = x
            gq = jobs[0].n - 4
            gq -= (gq + 1 + par) & 1

        self.qk(T(0))
        for h in range(0, H + 1):
            t = T(h)
            b = start[h]
            newstep = t and t['x'] == 0
            if newstep:
                g = t['g']
                W = start[step0[g + 1]] - b
                w0 = b - 2
                if g + 1 < G:
                    turn = (g + 1 + par) & 1 == 0
                    if turn or pubd <= g + 1:
                        hi = g + 2 if (turn and g >= cfg.k0) else g + 1
                        pub = [(w, k) for k in range(pubd, hi + 1) for w in 'KV']
                        pubd = hi + 1
                        fr = [(w, k) for k in (g - 1, g) if k >= 0 for w in 'KV'] if turn else []
                        regular = turn and g > cfg.k0
                        cap = None
                        if regular:
                            cap = 16 if self.lastdma >= g - 1 else 0
                        self.barrier(pub, fr, start[min(b0 - 2, 1)] if g == 0 else w0 - 2, cap)
                        if turn:
                            nfree += 2
                            if regular:
                                self.add(';;LOOPPOINT', 'loop', ['barseq'], [], rel=w0 - 1)
                            self.ring_advance(w0)
            if h % 8 == 0:
                self.add('; ---- unit %d' % h, 'mark', [], [], rel=b - 1, dl=b - 1)
            if T(h + 1):
                self.qk(T(h + 1))
            if newstep and g + 1 < G:
                a = (W - 10) / 24.0
                self.read_k(g + 1, (lambda f: None) if g == 0 else (lambda f: w0 + int(f * a)))
            if h in conv_at:
                self.q_conv(1, conv_at[h], rel=b - 8)
            if T(h - 1):
                self.pv(T(h - 1))
                if T(h - 1)['last']:
                    self.epilogue(T(h - 1))
            if newstep and g + 1 < G:
                self.read_v(g + 1, (lambda n: None) if g == 0 else (lambda n: w0 + int((8 + n) * a)))
                e = start[step0[g + 1] - 1] - 1
                self.add('', 'pseudo', [KF[(g + 1) & 1]], [], rel=e, dl=e)
                e = start[step0[g + 1]] - 4
                self.add('', 'pseudo', [VF[(g + 1) & 1]], [], rel=e, dl=e)
                todo = []
                while nxt < min(G, nfree, g + 8) and len(todo) < 2:
                    todo.append(nxt)
                    nxt += 1
                steady = todo == [g + 7] and g > cfg.k0
                nd = 4 * len(todo)
                pos = [w0 + 3 + int((k + 0.5) * (W - 8) / max(nd, 1)) for k in range(nd)]
                for q, k in enumerate(todo):
                    p = pos[4 * q:4 * q + 4]
                    mode = 'static'
                    if steady:
                        mode = 'add'
                        if two and t['j'] == 0 and (evmode or k <= jobs[0].n):
                            if not evmode:
                                self.event_init(k, 0)
                                evmode = True
                            mode = 'event'
                    self.dma_off(k, p[0] - 3, mode)
                    self.dma('K', k, [p[0] - 2, p[0], p[1]], static=not steady)
                    self.dma('V', k, [p[2] - 2, p[2], p[3]], static=not steady)
                    self.lastdma = g
                if two and g == 1:
                    self.job_masks(1, rel=b)
                if two and g == gq:
                    nq = 4 * jobs[1].b
                    for x in range(jobs[1].b):
                        self.q_load(1, x, rel=lambda tt, x=x: w0 + 5 + int((4 * x + tt) * (2 * W - 16) / nq))
            if t:
                self.sm(t)
            if h == b0:
                self.stamp(3, [], rel=b)
            if t and t['first'] and t['j'] == 1 and t['x'] == 0:
                self.stamp(4, [], rel=start[h - jobs[0].b])
            if t and t['j'] == 1 and t['i'] == 1 and t['x'] == 0:
                self.stamp(5, [], rel=b)
            if h == H - jobs[-1].b:
                self.stamp(6, [], rel=b)
        ops = self.P.schedule()
        F = Finalizer()
        lines = [l for l in F.run(ops) if l]
        self.F = F
        return lines


def fold(lines, tag):
    chunks, cur = [], []
    for l in lines:
        if l == ';;LOOPPOINT':
            chunks.append(cur)
            cur = []
        else:
            cur.append(l)
    chunks.append(cur)
    keyf = lambda c: '\n'.join(x for x in c if not x.startswith(';'))
    keys = [keyf(c) for c in chunks]
    out, i, nl, desc = [], 0, 0, []
    while i < len(chunks):
        r = 1
        while cfg.fold and 0 < i and i + r < len(chunks) - 1 and keys[i + r] == keys[i]:
            r += 1
        if r > 1:
            lab = 'L_%s_loop%d' % (tag, nl)
            nl += 1
            out.append('s_mov_b32 %s, %d' % (sCNT, r - 1))
            out.append('%s:' % lab)
            out += [x for x in chunks[i] if not x.startswith(';')]
            out.append('s_sub_u32 %s, %s, 1' % (sCNT, sCNT))
            out.append('s_cbranch_scc0 %s' % lab)
        else:
            out += chunks[i]
        desc.append('%dx%d' % (r, len(chunks[i])))
        i += r
    return out, ' '.join(desc)


def common_head(types):
    L = []
    a = L.append
    a('s_cmp_ge_u32 s2, 256')
    a('s_cbranch_scc1 L_exit')
    a('s_load_dwordx4 s[4:7], s[0:1], 0')
    a('s_load_dwordx2 s[8:9], s[0:1], 16')
    a('s_load_dwordx2 s[10:11], s[0:1], 32')
    if cfg.stamps:
        a('s_load_dwordx2 %s, s[0:1], 48' % sDBG.sub(0, 2))
        a('s_memtime s[72:73]')
        a('s_memrealtime s[92:93]')
    if cfg.pf == 1:
        a('s_getpc_b64 s[62:63]')
        a('L_pf:')
        a('s_lshr_b32 s3, s2, 3')
        a('v_lshl_add_u32 v6, v0, 5, s3')
        a('v_lshlrev_b32 v6, 7, v6')
        a('v_min_u32 v6, L_end%d-L_pf-4, v6' % (len(types) - 1))
        a('global_load_dword v127, v6, s[62:63]%s' % cfg.pf_flags)
    a('s_lshr_b32 s13, s2, 4')
    if cfg.pf == 2:
        a('s_getpc_b64 s[68:69]')
        a('L_pf:')
        first = 0
        for ti, t in enumerate(types):
            if ti == 0:
                a('s_mov_b32 s70, L_type0-L_pf')
            else:
                a('s_cmp_ge_u32 s13, %d' % first)
                a('s_cselect_b32 s70, L_type%d-L_pf, s70' % ti)
            first += t['cnt']
        a('v_lshrrev_b32 v6, 2, v0')
        a('v_lshl_add_u32 v6, v6, 7, s70')
        a('global_load_dword v127, v6, s[68:69]%s' % cfg.pf_flags)
        a('v_lshl_add_u32 v126, v0, 7, s70')
    a('v_lshrrev_b32 v1, 6, v0')
    a('v_and_b32 v0, 63, v0')
    a('v_readfirstlane_b32 %s, v1' % sW)
    first = 0
    for ti, t in enumerate(types):
        j = t['jobs'][0]
        par = sum(x.n for x in t['jobs']) & 1
        p0 = (CU[j.seq] + j.q0) | CU[j.seq] << 16
        p1 = CU[j.seq + 1] | j.b << 16 | (j.qstride // 64) << 20 | first << 24 | par << 28
        if ti == 0:
            a('s_mov_b32 s44, 0x%x' % p0)
            a('s_mov_b32 s45, 0x%x' % p1)
        else:
            a('s_cmp_ge_u32 s13, %d' % first)
            a('s_cselect_b32 s44, 0x%x, s44' % p0)
            a('s_cselect_b32 s45, 0x%x, s45' % p1)
        first += t['cnt']
    a('v_and_b32 v2, 15, v0')
    a('v_lshrrev_b32 %s, 4, v0' % vG)
    a('v_lshl_add_u32 v6, v1, 3, %s' % vG)
    for t in range(2):
        if t:
            a('v_add_u32 v6, 4, v6')
        a('v_and_b32 v7, 15, v6')
        a('v_xor_b32 v7, v7, v2')
        a('v_lshlrev_b32 v7, 4, v7')
        a('v_lshl_add_u32 %s, v6, 12, v7' % vDK.sub(t))
    a('v_subrev_u32 %s, 0x400, %s' % (vDK.sub(1), vDK.sub(1)))
    a('v_lshlrev_b32 v3, 4, v2')
    a('v_lshl_add_u32 %s, %s, 12, v3' % (vQO.sub(0), vG))
    for t in range(1, 4):
        a('v_add_u32 %s, 0x%x, %s' % (vQO.sub(t), 4 * t * ROW, vQO.sub(0)))
    a('s_and_b32 s3, s2, 7')
    a('s_bfe_u32 s62, s2, 0x10003')
    a('s_lshl_b32 s3, s3, %d' % (9 if cfg.hmap == 0 else 8))
    a('s_lshl_b32 s62, s62, %d' % (8 if cfg.hmap == 0 else 11))
    a('s_add_u32 s3, s3, s62')
    a('s_lshr_b32 %s, s44, 16' % sOFF)
    a('s_lshl_b32 %s, %s, 12' % (sOFF, sOFF))
    a('s_and_b32 s44, s44, 0xffff')
    a('s_bfe_u32 s62, s45, 0x40018')
    a('s_sub_u32 s46, s13, s62')
    a('s_bfe_u32 s62, s45, 0x40014')
    a('s_mul_i32 s62, s62, s46')
    a('s_lshl_b32 s62, s62, 2')
    a('s_bfe_u32 s63, s45, 0x40010')
    a('s_mul_i32 s63, s63, %s' % sW)
    a('s_add_u32 s62, s62, s63')
    a('s_lshl_b32 s62, s62, 4')
    a('s_add_u32 s44, s44, s62')
    a('s_lshl_b32 s44, s44, 12')
    a('s_and_b32 s62, s45, 0xffff')
    a('s_lshl_b32 s62, s62, 12')
    a('s_sub_u32 %s, s62, 0x%x' % (sQS(0).sub(2), ROW - 256))
    a('s_mov_b32 %s, 0x20000' % sQS(0).sub(3))
    a('s_lshl_b32 %s, %s, 11' % (sWB, sW))
    a('s_lshr_b32 s62, s45, 28')
    a('s_lshl_b32 s62, s62, 13')
    a('s_add_u32 s62, s62, %s' % sWB)
    a('s_mov_b32 m0, s62')
    for d in (sKS, sVS):
        a('s_mov_b32 %s, 0x%x' % (d.sub(2), (TOT - 1) * ROW + 256))
        a('s_mov_b32 %s, 0x20000' % d.sub(3))
    a('s_add_u32 s63, s44, 0x%x' % (16 * ROW))
    if cfg.stamps == 2:
        a('s_memtime s[80:81]')
    a('s_waitcnt lgkmcnt(0)')
    for d, p in ((sKS, 6), (sQS(0), 4), (sVS, 8)):
        a('s_add_u32 %s, s%d, s3' % (d.sub(0), p))
        a('s_addc_u32 %s, s%d, 0' % (d.sub(1), p + 1))
    for t in range(2):
        a('buffer_load_dwordx4 %s, %s, %s offen%s%s lds' % (vDK.sub(t), sKS, sOFF, ' offset:1024' if t else '', cfg.ld_flags))
    for t in range(4):
        a('buffer_load_dwordx4 %s, %s, %s, s44 offen%s' % (OSET[0].sub(4 * t, 4), vQO.sub(t), sQS(0), cfg.q_flags))
    if cfg.stamps == 2:
        a('s_memtime s[82:83]')
    a('s_add_u32 m0, s62, 0x%x' % VBASE)
    a('v_bfe_u32 v8, v0, 2, 2')
    a('v_and_b32 v9, 3, v0')
    a('v_lshl_add_u32 v6, v1, 3, v8')
    a('v_lshlrev_b32 v7, 4, v9')
    a('v_lshl_add_u32 v7, %s, 6, v7' % vG)
    a('v_lshl_add_u32 %s, v6, 12, v7' % vDV.sub(0))
    a('v_xor_b32 %s, 32, %s' % (vDV.sub(1), vDV.sub(0)))
    a('v_add_u32 %s, 0x%x, %s' % (vDV.sub(1), 4 * ROW - 1024, vDV.sub(1)))
    if cfg.pf == 2:
        a('v_add_u32 v126, 0x2000, v126')
        a('v_min_u32 v126, L_end%d-L_pf-4, v126' % (len(types) - 1))
    a('s_add_u32 %s, s10, s3' % sOS(0).sub(0))
    a('s_addc_u32 %s, s11, 0' % sOS(0).sub(1))
    a('s_mov_b32 %s, %s' % (sOS(0).sub(2), sQS(0).sub(2)))
    a('s_mov_b32 %s, 0x20000' % sOS(0).sub(3))
    a('s_mov_b32 %s, %s' % (sCUR, sWB))
    a('s_mov_b32 %s, 0x4000' % sMASK)
    a('s_mov_b32 %s, 0x%x' % (sC.sub(0), CSCALE))
    a('s_mov_b32 %s, 0x%x' % (sC.sub(1), CSCALE))
    a('s_mov_b32 %s, 0x%x' % (sTHR, LTHR))
    a('s_mov_b32 %s, 0' % sFLAG)
    a('v_xor_b32 v6, %s, v2' % vG)
    a('v_lshlrev_b32 v6, 4, v6')
    a('v_lshl_add_u32 %s, v2, 8, v6' % vKA.sub(0))
    for s in range(1, 4):
        a('v_xor_b32 %s, 0x%x, %s' % (vKA.sub(s), 64 * s, vKA.sub(0)))
    a('v_and_b32 v6, 1, %s' % vG)
    a('v_lshlrev_b32 v6, 5, v6')
    a('v_lshl_add_u32 v6, v9, 3, v6')
    a('v_lshl_add_u32 v6, v8, 6, v6')
    a('v_lshl_add_u32 v6, %s, 10, v6' % vG)
    a('v_add_u32 %s, 0x%x, v6' % (vVA.sub(0), VBASE))
    a('v_xor_b32 %s, 32, %s' % (vVA.sub(1), vVA.sub(0)))
    a('v_mul_u32_u24 v6, 0x%x, v1' % STG_W)
    a('v_add_u32 v6, 0x%x, v6' % STG)
    a('v_mul_u32_u24 v7, 272, v2')
    a('v_add_u32 v7, v7, v6')
    a('v_lshl_add_u32 %s, %s, 4, v7' % (vQF, vG))
    a('v_lshl_add_u32 %s, %s, 3, v7' % (vOW, vG))
    a('v_mul_u32_u24 v7, 272, %s' % vG)
    a('v_add3_u32 %s, v7, v6, v3' % vQL)
    a('v_cmp_eq_u32 vcc, 0, v9')
    a('v_mov_b32 v6, 0x3f803f80')
    a('s_nop 0')
    a('v_cndmask_b32 %s, 0, v6, vcc' % ONES.sub(0))
    for k in range(1, 4):
        a('v_mov_b32 %s, %s' % (ONES.sub(k), ONES.sub(0)))
    if cfg.fair:
        a('s_barrier')
    for t in range(2):
        a('buffer_load_dwordx4 %s, %s, %s offen%s%s lds' % (vDV.sub(t), sVS, sOFF, ' offset:1024' if t else '', cfg.ld_flags))
    for t in range(4):
        a('buffer_load_dwordx4 %s, %s, %s, s63 offen%s' % (OSET[1].sub(4 * t, 4), vQO.sub(t), sQS(0), cfg.q_flags))
    if cfg.stamps == 2:
        a('s_memtime s[84:85]')
    acc = 0
    for ti, t in enumerate(types):
        acc += t['cnt']
        if ti < len(types) - 1:
            a('s_cmp_lt_u32 s13, %d' % acc)
            a('s_cbranch_scc0 L_not%d' % ti)
        a('s_getpc_b64 s[62:63]')
        a('L_pc%d:' % ti)
        a('s_add_u32 s62, s62, L_type%d-L_pc%d' % (ti, ti))
        a('s_addc_u32 s63, s63, 0')
        a('s_setpc_b64 s[62:63]')
        a('L_not%d:' % ti)
    return L


def stamp_tail():
    L = []
    a = L.append
    a('s_memtime s[86:87]')
    a('s_waitcnt vmcnt(0)')
    a('s_memtime s[88:89]')
    a('s_memrealtime s[94:95]')
    a('s_waitcnt lgkmcnt(0)')
    a('s_mov_b32 s66, 0x100000')
    a('s_mov_b32 s67, 0x20000')
    a('s_lshl_b32 s62, s2, 2')
    a('s_add_u32 s62, s62, %s' % sW)
    a('s_lshl_b32 s62, s62, 6')
    a('v_mov_b32 v1, 0')
    for i, r in enumerate([72 + 2 * k for k in range(9)] + [92, 94]):
        a('v_mov_b32 v2, s%d' % r)
        a('buffer_store_dword v2, v1, s[64:67], s62 offen offset:%d' % (4 * i))
    return L


def make_types():
    J = Job
    return [
        dict(cnt=4, jobs=[J(0, 4, 0, 256)]),
        dict(cnt=3, jobs=[J(6, 4, 0, 256)]),
        dict(cnt=1, jobs=[J(6, 3, 768), J(5, 2, 0)]),
        dict(cnt=1, jobs=[J(3, 3, 512), J(7, 3, 384)]),
        dict(cnt=1, jobs=[J(4, 4, 0), J(5, 3, 256)]),
        dict(cnt=2, jobs=[J(4, 3, 256, 192), J(7, 3, 0, 192)]),
        dict(cnt=1, jobs=[J(3, 4, 0), J(1, 2, 384)]),
        dict(cnt=1, jobs=[J(3, 4, 256), J(5, 2, 128)]),
        dict(cnt=2, jobs=[J(2, 4, 0, 256), J(1, 3, 0, 192)]),
    ]


MACROS = r"""
; ---- shorthands (register numbers only; every tuple is 4 registers unless noted)
.macro QK d,a,b,c       ; S^T tile: v[d] = K frag a[a] x Q frag a[b] + v[c]
v_mfma_f32_16x16x32_bf16 v[\d:\d+3], a[\a:\a+3], a[\b:\b+3], v[\c:\c+3]
.endm
.macro QZ d,a,b         ; same, accumulator starts at 0
v_mfma_f32_16x16x32_bf16 v[\d:\d+3], a[\a:\a+3], a[\b:\b+3], 0
.endm
.macro PV d,a,b         ; O^T tile: v[d] += V^T frag a[a] x P frag v[b]
v_mfma_f32_16x16x32_bf16 v[\d:\d+3], a[\a:\a+3], v[\b:\b+3], v[\d:\d+3]
.endm
.macro PZ d,a,b
v_mfma_f32_16x16x32_bf16 v[\d:\d+3], a[\a:\a+3], v[\b:\b+3], 0
.endm
.macro LS d,a,b         ; row sums: a[d] += ones v[a] x P frag v[b]
v_mfma_f32_16x16x32_bf16 a[\d:\d+3], v[\a:\a+3], v[\b:\b+3], a[\d:\d+3]
.endm
.macro LZ d,a,b
v_mfma_f32_16x16x32_bf16 a[\d:\d+3], v[\a:\a+3], v[\b:\b+3], 0
.endm
.macro RK d,a,o         ; 16-byte LDS read into a[d]
ds_read_b128 a[\d:\d+3], v\a offset:\o
.endm
.macro RV d,a,o         ; transposing LDS read into a[d:d+1]
ds_read_b64_tr_b16 a[\d:\d+1], v\a offset:\o
.endm
.macro EX d
v_exp_f32 v\d, v\d
.endm
.macro CV d,a,b
v_cvt_pk_bf16_f32 v\d, v\a, v\b
.endm
.macro PM d,r,h         ; v[d:d+1] *= v[r+h]
v_pk_mul_f32 v[\d:\d+1], v[\d:\d+1], v[\r:\r+1] op_sel:[0,\h] op_sel_hi:[1,\h]
.endm
""".strip().split('\n')


def compact(lines):
    import re
    T = r'\[(\d+):\d+\]'
    rules = [
        (MF + r' v%s, a%s, a%s, v%s$' % (T, T, T, T), r'QK \1,\2,\3,\4'),
        (MF + r' v%s, a%s, a%s, 0$' % (T, T, T), r'QZ \1,\2,\3'),
        (MF + r' v%s, a%s, v%s, v\[\1:\d+\]$' % (T, T, T), r'PV \1,\2,\3'),
        (MF + r' v%s, a%s, v%s, 0$' % (T, T, T), r'PZ \1,\2,\3'),
        (MF + r' a%s, v%s, v%s, a\[\1:\d+\]$' % (T, T, T), r'LS \1,\2,\3'),
        (MF + r' a%s, v%s, v%s, 0$' % (T, T, T), r'LZ \1,\2,\3'),
        (r'ds_read_b128 a%s, v(\d+) offset:(\d+)$' % T, r'RK \1,\2,\3'),
        (r'ds_read_b64_tr_b16 a%s, v(\d+) offset:(\d+)$' % T, r'RV \1,\2,\3'),
        (r'v_exp_f32 v(\d+), v\1$', r'EX \1'),
        (r'v_cvt_pk_bf16_f32 v(\d+), v(\d+), v(\d+)$', r'CV \1,\2,\3'),
        (r'v_pk_mul_f32 v%s, v\[\1:\d+\], v%s op_sel:\[0,(\d)\] op_sel_hi:\[1,\3\]$' % (T, T), r'PM \1,\2,\3'),
    ]
    rules = [(re.compile(a), b) for a, b in rules]
    out = []
    for l in lines:
        for rx, rep in rules:
            m = rx.match(l)
            if m:
                l = m.expand(rep)
                break
        out.append(l)
    i = out.index('.text')
    return out[:i + 1] + MACROS + out[i + 1:]


def check_cover(types):
    cov = [[0] * LEN[s] for s in range(8)]
    for t in types:
        for sub in range(t['cnt']):
            for j in t['jobs']:
                q = j.q0 + sub * j.qstride
                for r in range(q, min(q + 64 * j.b, j.L)):
                    cov[j.seq][r] += 1
    assert all(c == 1 for s in cov for c in s)
    assert sum(t['cnt'] for t in types) == 16


def generate(types, verbose=True):
    check_cover(types)
    out = []
    a = out.append
    a('; @launch grid=(256,1,1) block=(256,1,1) lds=%d' % LDS_BYTES)
    a('.amdgcn_target "amdgcn-amd-amdhsa--gfx950"')
    a('.text')
    a('.globl %s' % NAME)
    a('.p2align 8')
    a('.type %s,@function' % NAME)
    a('%s:' % NAME)
    out += common_head(types)
    a('L_exit:')
    a('s_endpgm')
    first = 0
    for ti, t in enumerate(types):
        a('.p2align 7')
        a('L_type%d:' % ti)
        if cfg.only < 0 or cfg.only == ti:
            B = Builder(t['jobs'])
            lines = B.build()
            fl, desc = fold(lines, 't%d' % ti)
            out += fl
            if cfg.stamps:
                out += stamp_tail()
            if verbose:
                ov = B.P.overflow
                print('type %d: %d -> %d lines, mfma %d, est cycles %d, overflow %d in %d gaps, nops %d waits %d [%s]' % (
                    ti, len(lines), len(fl), B.P.nmfma, B.P.end_time, sum(x[1] for x in ov), len(ov), B.F.nops, B.F.nwaits, desc),
                    file=sys.stderr)
        first += t['cnt']
        a('s_endpgm')
        a('L_end%d:' % ti)
    if cfg.compact:
        out = compact(out)
        a = out.append
    a('.section .rodata,"a"')
    a('.p2align 6')
    a('.amdhsa_kernel %s' % NAME)
    a('  .amdhsa_next_free_vgpr 512')
    a('  .amdhsa_next_free_sgpr 102')
    a('  .amdhsa_accum_offset 256')
    a('  .amdhsa_group_segment_fixed_size 0')
    a('  .amdhsa_kernarg_size 56')
    a('  .amdhsa_user_sgpr_count 2')
    a('  .amdhsa_user_sgpr_kernarg_segment_ptr 1')
    a('  .amdhsa_system_sgpr_workgroup_id_x 1')
    a('.end_amdhsa_kernel')
    return '\n'.join(out) + '\n'


if __name__ == '__main__':
    for o in sys.argv[2:]:
        k, v = o.split('=')
        setattr(cfg, k, v if k.endswith('flags') else int(v))
    txt = generate(make_types())
    open(sys.argv[1], 'w').write(txt)
```

```python
import sys, math, struct
from sched16 import *

NAME = 'standalone__varlen_attn_packed__ragged_kernel'
CU = [0, 992, 1451, 1933, 2583, 3189, 3578, 4512, 5082]
LEN = [CU[i + 1] - CU[i] for i in range(8)]
TOT = CU[-1]
ROW = 4096
MF = 'v_mfma_f32_16x16x32_bf16'


class Cfg:
    stamps = 0
    ld_flags = ' nt'
    q_flags = ' nt'
    store_flags = ' nt'
    fold = 1
    pf = 2
    pf_flags = ''
    pf2_flags = ''
    only = -1
    k0 = 3
    diag = 0
    diagtype = -1
    diagshift = 1
    compact = 1
    hmap = 0
    fair = 1
cfg = Cfg()


def f2u(x):
    return struct.unpack('<I', struct.pack('<f', x))[0]


CSCALE = f2u(math.log2(math.e) / math.sqrt(128.0))
LTHR = f2u(2.0 ** 40)

TMP = V(0, 12)
vHM = V(12, 2)
vQF, vQL = V(14), V(15)
SSET = [V(16, 8), V(24, 8)]
PSET = [V(32, 4), V(36, 4)]
NMSET = [V(40 + 4 * i, 4) for i in range(4)]
ONES = V(56, 4)
vKA = V(60, 4)
vVA = V(64, 2)
vDK = V(66, 2)
vDV = V(68, 2)
vOW = V(70)
vG = V(71)
vQO = V(72, 4)
RCP = V(76, 4)
RAW2 = V(80, 48)
OSET = [V(128 + 32 * i, 32) for i in range(4)]
KF = [A(0, 32), A(32, 32)]
VF = [A(64, 32), A(96, 32)]
QSET = [A(128 + 16 * i, 16) for i in range(7)]
LSET = [A(240 + 4 * i, 4) for i in range(4)]

sW, sSUB = S(12), S(46)
sC = S(14, 2)
sKS, sVS = S(16, 4), S(20, 4)
def sQS(j): return S(24 + 8 * j, 4)
def sOS(j): return S(28 + 8 * j, 4)
sOFF = S(40)
sCUR, sPB, sMASK = S(41), S(42), S(43)
def sQROW(j): return S(44 + j)
sT = [S(48 + i) for i in range(6)]
sFLAG, sTHR, sCNT, sEV = S(54), S(55), S(56), S(57)
sINC, sSPEC = S(58, 2), S(60, 2)
sWB = S(47)
sDBG = S(64, 4)

VBASE = 0x10000
STG = 0x20000
STG_W = 4352
LDS_BYTES = STG + 4 * STG_W
GRAY = [0, 0x4000, 0xC000, 0x8000]


class Job:
    def __init__(self, seq, b, q0, qstride=0):
        self.seq, self.b, self.q0, self.qstride = seq, b, q0, qstride
        self.L = LEN[seq]
        self.n = (self.L + 31) // 32
        self.rem = self.L - 32 * (self.n - 1)


class Builder:
    def __init__(self, jobs):
        self.jobs = jobs
        self.P = Prog()
        self.tmpi = self.sti = self.tmi = 0
        self.force, self.fence = [], False
        qi = 0
        for j, job in enumerate(jobs):
            job.Q = QSET[qi:qi + job.b]
            qi += job.b
            sh = 0 if j == 0 else jobs[0].b % 4
            job.slot = [(x + sh) % 4 for x in range(job.b)]
            if j == 0:
                job.raw = [OSET[job.slot[x]].sub(0, 16) for x in range(job.b)]
            else:
                job.raw = [RAW2.sub(16 * x, 16) for x in range(job.b)]

    def add(self, *a, **k):
        return self.P.add(Op(*a, **k))

    def valu(self, text, rd, wr, **k):
        return self.add(text, 'valu', rd, wr, **k)

    def salu(self, text, rd, wr, **k):
        return self.add(text, 'salu', rd, wr, **k)

    def tmp2(self):
        r = TMP.sub(2 * (self.tmpi % 4), 2)
        self.tmpi += 1
        return r

    def tmpm(self):
        r = TMP.sub(8 + 2 * (self.tmi % 2), 2)
        self.tmi += 1
        return r

    def chain(self, ops):
        for p, o in zip(ops, ops[1:]):
            o.preds[p] = max(o.preds.get(p, 0), p.space)

    def stmp(self):
        r = sT[self.sti % len(sT)]
        self.sti += 1
        return r

    def stamp(self, i, after=(), rel=None, chain=None):
        if cfg.stamps == 1 or (cfg.stamps == 2 and i < 4):
            r = S(72 + 2 * i, 2)
            self.add('s_memtime %s' % r, 'salu', list(after), [r] + ([chain] if chain else []), rel=rel, dl=rel if rel is not None else -100)

    def job_setup(self, j, rel=None):
        job = self.jobs[j]
        nrec = (CU[job.seq + 1] - 1) * ROW + 256
        q = sQROW(j)
        assert j > 0
        self.salu('s_mul_i32 %s, %s, 0x%x' % (q, sW, 16 * job.b * ROW), [sW], [q], rel=rel)
        if job.qstride:
            t = self.stmp()
            self.salu('s_mul_i32 %s, %s, 0x%x' % (t, sSUB, job.qstride * ROW), [sSUB], [t], rel=rel)
            self.salu('s_add_u32 %s, %s, %s' % (q, q, t), [q, t], [q], rel=rel)
        self.salu('s_add_u32 %s, %s, 0x%x' % (q, q, (CU[job.seq] + job.q0) * ROW), [q], [q], rel=rel)
        for d, d0 in ((sQS(j), sQS(0)), (sOS(j), sOS(0))):
            if j:
                self.salu('s_mov_b64 %s, %s' % (d.sub(0, 2), d0.sub(0, 2)), [d0.sub(0, 2)], [d.sub(0, 2)], rel=rel)
            self.salu('s_mov_b32 %s, 0x%x' % (d.sub(2), nrec), [], [d.sub(2)], rel=rel)
            self.salu('s_mov_b32 %s, 0x20000' % d.sub(3), [], [d.sub(3)], rel=rel)

    def job_masks(self, j, rel=None):
        job = self.jobs[j]
        r = job.rem % 16
        job.G = [(r + 3) // 4, r // 4]
        if r == 0:
            return
        for k in range(2):
            if 0 < job.G[k] < 4 and (k == 0 or job.G[0] != job.G[1]):
                h = vHM.sub(k)
                self.valu('v_subrev_u32 %s, %d, %s' % (h, job.G[k], vG), [vG], [h], rel=rel)
                self.valu('v_ashrrev_i32 %s, 31, %s' % (h, h), [h], [h], rel=rel)
                self.valu('v_not_b32 %s, %s' % (h, h), [h], [h], rel=rel)
                self.valu('v_and_b32 %s, 0xff800000, %s' % (h, h), [h], [h], rel=rel)

    def rowoff(self, g):
        j, i = self.blocks[g]
        job = self.jobs[j]
        return (CU[job.seq] + (0 if i == 0 else job.rem + 32 * (i - 1))) * ROW

    def slot(self, g):
        v = g + self.par
        return GRAY[(v >> 1) % 4] + (v & 1) * 8192

    def dma_off(self, g, rel, mode):
        if mode == 'static':
            self.salu('s_mov_b32 %s, 0x%x' % (sOFF, self.rowoff(g)), [], [sOFF], rel=rel, dl=rel)
        elif mode == 'add':
            self.salu('s_add_u32 %s, %s, 0x%x' % (sOFF, sOFF, self.rowoff(g) - self.rowoff(g - 1)), [sOFF], [sOFF], rel=rel, dl=rel)
        else:
            self.salu('s_sub_u32 %s, %s, 1\ns_cselect_b64 %s, %s, %s' % (sEV, sEV, sINC, sSPEC, sINC), [sEV, sINC, sSPEC], [sEV, sINC],
                      rel=rel - 2, dl=rel - 1, cost=8)
            self.salu('s_add_u32 %s, %s, %s' % (sOFF, sOFF, sINC.sub(0)), [sOFF, sINC.sub(0)], [sOFF], rel=rel, dl=rel)
            self.salu('s_mov_b32 %s, %s' % (sINC.sub(0), sINC.sub(1)), [sINC.sub(1)], [sINC.sub(0)], rel=rel + 4, dl=rel + 6)
            self.salu('s_mov_b32 %s, 0x%x' % (sINC.sub(1), 32 * ROW), [], [sINC.sub(1)], rel=rel + 5, dl=rel + 7)

    def event_init(self, gfirst, rel):
        g2 = self.jobs[0].n
        self.salu('s_mov_b32 %s, %d' % (sEV, g2 - gfirst), [], [sEV], rel=rel)
        for k in range(2):
            self.salu('s_mov_b32 %s, 0x%x' % (sINC.sub(k), 32 * ROW), [], [sINC.sub(k)], rel=rel)
            self.salu('s_mov_b32 %s, 0x%x' % (sSPEC.sub(k), (self.rowoff(g2 + k) - self.rowoff(g2 + k - 1)) & 0xffffffff), [], [sSPEC.sub(k)], rel=rel)

    def dma(self, which, g, rels, static=False, after=(), silent=False):
        base = VBASE if which == 'V' else 0
        n0 = len(self.P.ops)
        if static:
            self.salu('s_add_u32 m0, %s, 0x%x' % (sWB, base + self.slot(g)), [sWB], ['m0'], rel=rels[0], dl=rels[0])
        else:
            assert self.slot(g) & 0xc000 == self.prev
            self.salu('s_add_u32 m0, %s, 0x%x' % (sPB, base + (self.slot(g) & 0x2000)), [sPB], ['m0'], rel=rels[0], dl=rels[0])
        srd, vo = (sKS, vDK) if which == 'K' else (sVS, vDV)
        for t in range(2):
            self.add('buffer_load_dwordx4 %s, %s, %s offen%s%s lds' % (vo.sub(t), srd, sOFF, ' offset:1024' if t else '', cfg.ld_flags),
                     'dma', [vo.sub(t), srd, sOFF, 'm0', ('free', which, self.slot(g)), 'vmorder'] + list(after),
                     [('dma', which, g, t), 'vmorder'], rel=rels[1 + t], dl=rels[1 + t], lat=4)
        for o in self.P.ops[n0:]:
            o.silent = silent

    def barrier(self, pub, free, rel, vmcap=None, after=()):
        rd, wr = ['barseq'] + list(after), ['barseq']
        for which, g in pub:
            rd += [('dma', which, g, 0), ('dma', which, g, 1)]
            wr += [('pub', which, g)]
        for which, g in free:
            rd += self.rdtok[(which, g)]
            wr += [('free', which, self.slot(g))]
        self.add('s_barrier', 'bar', rd, wr, rel=rel, dl=rel).vmcap = vmcap

    def ring_advance(self, rel):
        self.prev = self.cur
        self.cur = GRAY[(GRAY.index(self.cur) + 1) % 4]
        self.salu('s_mov_b32 %s, %s' % (sPB, sCUR), [sCUR], [sPB], rel=rel, dl=rel)
        self.salu('s_xor_b32 %s, %s, %s' % (sCUR, sCUR, sMASK), [sCUR, sMASK], [sCUR], rel=rel, dl=rel)
        for r in [vKA.sub(i) for i in range(4)] + [vVA.sub(i) for i in range(2)]:
            self.valu('v_xor_b32 %s, %s, %s' % (r, sMASK, r), [r, sMASK], [r])
        self.salu('s_xor_b32 %s, %s, 0xc000' % (sMASK, sMASK), [sMASK], [sMASK])

    def rdoff(self, g):
        assert self.cur == 0 or self.slot(g) & 0xc000 == self.cur
        return self.slot(g) - self.cur

    def read_k(self, g, relf):
        j, i = self.blocks[g]
        nsub = 1 if (i == 0 and self.jobs[j].rem <= 16) else 2
        toks = []
        for u in range(nsub):
            for s in range(4):
                f = 4 * u + s
                d = KF[g & 1].sub(4 * f, 4)
                tok = ('rd', 'K', g, f)
                toks.append(tok)
                r = relf(f)
                self.add('ds_read_b128 %s, %s offset:%d' % (d, vKA.sub(s), self.rdoff(g) + u * 4096), 'ds',
                         [vKA.sub(s), ('pub', 'K', g)], [d, tok], rel=r, dl=None if r is None else r + 2)
        self.rdtok[('K', g)] = toks

    def read_v(self, g, relf):
        toks = []
        for db in range(8):
            for jj in range(2):
                n = 2 * db + jj
                d = VF[g & 1].sub(4 * db + 2 * jj, 2)
                tok = ('rd', 'V', g, n)
                toks.append(tok)
                r = relf(n)
                self.add('ds_read_b64_tr_b16 %s, %s offset:%d' % (d, vVA.sub(db & 1), self.rdoff(g) + jj * 4096 + (db >> 1) * 256),
                         'ds', [vVA.sub(db & 1), ('pub', 'V', g)], [d, tok], rel=r, dl=None if r is None else r + 2)
        self.rdtok[('V', g)] = toks

    def q_load(self, j, x, rel=None, after=(), silent=False):
        job = self.jobs[j]
        n0 = len(self.P.ops)
        so = self.stmp()
        self.salu('s_add_u32 %s, %s, 0x%x' % (so, sQROW(j), 16 * x * ROW), [sQROW(j)], [so], rel=None if rel is None else rel(0) - 2)
        for t in range(4):
            T = job.raw[x].sub(4 * t, 4)
            r = None if rel is None else rel(t)
            self.add('buffer_load_dwordx4 %s, %s, %s, %s offen%s' % (T, vQO.sub(t), sQS(j), so, cfg.q_flags), 'vld',
                     [vQO.sub(t), sQS(j), so, 'vmorder'] + list(after), [T, 'vmorder'], rel=r, dl=r, lat=4)
        for o in self.P.ops[n0:]:
            o.silent = silent

    def q_conv(self, j, x, rel=None, after=()):
        job = self.jobs[j]
        after = list(after)
        for t in range(4):
            T = job.raw[x].sub(4 * t, 4)
            for e in range(4):
                y = T.sub(e)
                p = self.tmp2()
                self.valu('v_lshlrev_b32 %s, 16, %s' % (p.sub(0), y), [y] + after, [p.sub(0)], rel=rel)
                self.valu('v_and_b32 %s, 0xffff0000, %s' % (p.sub(1), y), [y] + after, [p.sub(1)], rel=rel)
                self.add('v_pk_mul_f32 %s, %s, %s' % (p, p, sC), 'pk', [p, sC], [p], rel=rel)
                self.force.append(self.valu('v_cvt_pk_bf16_f32 %s, %s, %s' % (y, p.sub(0), p.sub(1)), [p], [y], rel=rel))
        self.add('', 'mark', [], ['stgx']).eager = True
        ids = []
        n0 = len(self.P.ops)
        for t in range(4):
            T = job.raw[x].sub(4 * t, 4)
            ids.append(('stg', j, x, 'q', t))
            self.add('ds_write_b128 %s, %s offset:%d' % (vQL, T, t * 4 * 272), 'dsw', [vQL, T, 'stgx'], [ids[-1]]).space = 52
        self.chain(self.P.ops[-4:])
        for s in range(4):
            d = job.Q[x].sub(4 * s, 4)
            self.add('ds_read_b128 %s, %s offset:%d' % (d, vQF, s * 64), 'ds', [vQF, 'stgx'] + ids, [d], lat=140)
        for o in self.P.ops[n0:]:
            o.eager = True

    def mfma(self, d, a, b, c):
        o = self.add('%s %s, %s, %s, %s' % (MF, d, a, b, c if c else '0'), 'mfma', [a, b] + ([c] if c else []), [d],
                     srcc=[c] if c else [])
        if self.fence:
            for p in self.force:
                o.preds.setdefault(p, 4)
            self.force = []
            self.fence = False

    def qk(self, t):
        job = self.jobs[t['j']]
        for u in range(t['nsub']):
            d = SSET[t['h'] % 2].sub(4 * u, 4)
            for s in range(4):
                c = d if s else (None if t['first'] else NMSET[t['slot']])
                self.mfma(d, KF[t['g'] & 1].sub(16 * u + 4 * s, 4), job.Q[t['x']].sub(4 * s, 4), c)

    def pv(self, t):
        Pr = PSET[t['h'] % 2]
        L = LSET[t['slot']]
        self.fence = True
        if t['last']:
            self.mfma(L, ONES, Pr, None if t['first'] else L)
        for db in range(8):
            d = OSET[t['slot']].sub(4 * db, 4)
            self.mfma(d, VF[t['g'] & 1].sub(4 * db, 4), Pr, None if t['first'] else d)
        if not t['last']:
            self.mfma(L, ONES, Pr, None if t['first'] else L)

    def sm(self, t):
        job = self.jobs[t['j']]
        Sr, Pr, NM = SSET[t['h'] % 2], PSET[t['h'] % 2], NMSET[t['slot']]
        used = list(range(8))
        if t['first']:
            nr = 4 * t['nsub']
            tt = self.tmpm()
            a, b = tt.sub(0), tt.sub(1)
            self.valu('v_max3_f32 %s, %s, %s, %s' % (a, Sr.sub(0), Sr.sub(1), Sr.sub(2)), [Sr.sub(0, 3)], [a])
            if nr == 4:
                self.valu('v_max_f32 %s, %s, %s' % (a, a, Sr.sub(3)), [a, Sr.sub(3)], [a])
            else:
                self.valu('v_max3_f32 %s, %s, %s, %s' % (b, Sr.sub(4), Sr.sub(5), Sr.sub(6)), [Sr.sub(4, 3)], [b])
                self.valu('v_max3_f32 %s, %s, %s, %s' % (a, a, Sr.sub(3), Sr.sub(7)), [a, Sr.sub(3), Sr.sub(7)], [a])
                self.valu('v_max_f32 %s, %s, %s' % (a, a, b), [tt], [a])
            self.valu('v_mov_b32 %s, %s' % (b, a), [a], [b])
            self.valu('v_permlane32_swap_b32 %s, %s' % (a, b), [tt], [tt], sub='perm')
            self.valu('v_max_f32 %s, %s, %s' % (a, a, b), [tt], [a])
            self.valu('v_mov_b32 %s, %s' % (b, a), [a], [b])
            self.valu('v_permlane16_swap_b32 %s, %s' % (a, b), [tt], [tt], sub='perm')
            self.valu('v_min_f32_e64 %s, -%s, -%s' % (NM.sub(0), a, b), [tt], [NM.sub(0)])
            r16 = job.rem % 16
            up = t['nsub'] - 1 if r16 else -1
            src, used = {}, []
            made = {}
            for r in range(nr):
                if r // 4 != up:
                    src[r] = NM.sub(0)
                else:
                    k = 0 if (r % 4) < (r16 % 4) or job.G[0] == job.G[1] else 1
                    if job.G[k] == 0:
                        continue
                    if job.G[k] == 4:
                        src[r] = NM.sub(0)
                    else:
                        if k not in made:
                            made[k] = tt.sub(k)
                            self.valu('v_add_f32 %s, %s, %s' % (made[k], NM.sub(0), vHM.sub(k)), [NM.sub(0), vHM.sub(k)], [made[k]])
                        src[r] = made[k]
                used.append(r)
            for r in used:
                y = Sr.sub(r)
                self.valu('v_add_f32 %s, %s, %s' % (y, src[r], y), [y, src[r]], [y])
            for r in range(1, 4):
                self.valu('v_mov_b32 %s, %s' % (NM.sub(r), NM.sub(0)), [NM.sub(0)], [NM.sub(r)])
        for r in range(8):
            y = Sr.sub(r)
            if r in used:
                self.add('v_exp_f32 %s, %s' % (y, y), 'trans', [y], [y])
            if r % 2 == 1:
                p, lo = Pr.sub(r // 2), Sr.sub(r - 1)
                if r in used:
                    self.valu('v_cvt_pk_bf16_f32 %s, %s, %s' % (p, lo, y), [lo, y], [p])
                elif r - 1 in used:
                    self.valu('v_cvt_pk_bf16_f32 %s, %s, 0' % (p, lo), [lo], [p])
                else:
                    self.valu('v_mov_b32 %s, 0' % p, [], [p], rel=self.start[t['h']])

    def epilogue(self, t):
        j, x, sl = t['j'], t['x'], t['slot']
        job = self.jobs[j]
        O, rc, L = OSET[sl], RCP.sub(sl), LSET[sl].sub(0)
        self.valu('v_accvgpr_read_b32 %s, %s' % (rc, L), [L], [rc])
        self.valu('v_cmp_nge_f32 vcc, %s, %s' % (sTHR, rc), [sTHR, rc], ['vcc'])
        st = self.stmp()
        self.salu('s_cmp_lg_u64 vcc, 0\ns_cselect_b32 %s, %d, 0' % (st, 1 << (4 * j + x)), ['vcc'], [st], cost=8)
        self.salu('s_or_b32 %s, %s, %s' % (sFLAG, sFLAG, st), [sFLAG, st], [sFLAG])
        self.add('v_rcp_f32 %s, %s' % (rc, rc), 'trans', [rc], [rc])
        rp, h = V(rc.b & ~1, 2), rc.b & 1
        dl = self.start[t['h'] + 2]
        for db in range(8):
            src = O.sub(4 * db, 4)
            for e in range(2):
                y = src.sub(2 * e, 2)
                self.force.append(self.add('v_pk_mul_f32 %s, %s, %s op_sel:[0,%d] op_sel_hi:[1,%d]' % (y, y, rp, h, h), 'pk', [y, rc], [y]))
            for e in range(2):
                y = src.sub(2 * e, 2)
                o = self.valu('v_cvt_pk_bf16_f32 %s, %s, %s' % (src.sub(e), y.sub(0), y.sub(1)), [y], [src.sub(e)])
                if db < 2:
                    self.force.append(o)
        self.add('', 'mark', [], ['stgx']).eager = True
        ids = []
        n0 = len(self.P.ops)
        for db in range(8):
            ids.append(('stg', j, x, 'o', db))
            self.add('ds_write_b64 %s, %s offset:%d' % (vOW, O.sub(4 * db, 2), db * 32), 'dsw', [vOW, O.sub(4 * db, 2), 'stgx'], [ids[-1]],
                     dl=dl + 2 * db)
        self.chain(self.P.ops[-8:])
        so = self.stmp()
        self.salu('s_add_u32 %s, %s, 0x%x' % (so, sQROW(j), 16 * x * ROW), [sQROW(j)] + ids[:1], [so])
        for tt in range(4):
            d = job.Q[x].sub(4 * tt, 4)
            self.add('ds_read_b128 %s, %s offset:%d' % (d, vQL, tt * 4 * 272), 'ds', [vQL, 'stgx'] + ids, [d], dl=dl + 16, lat=140)
        for tt in range(4):
            d = job.Q[x].sub(4 * tt, 4)
            self.add('buffer_store_dwordx4 %s, %s, %s, %s offen%s' % (d, vQO.sub(tt), sOS(j), so, cfg.store_flags), 'vst',
                     [d, vQO.sub(tt), sOS(j), so], [], lat=4, dl=dl + 26 + 4 * tt)
        for o in self.P.ops[n0:]:
            o.eager = True

    def build(self):
        jobs = self.jobs
        self.blocks = [(j, i) for j, job in enumerate(jobs) for i in range(job.n)]
        G = len(self.blocks)
        self.rdtok = {}
        tiles, step0 = [], {}
        for g, (j, i) in enumerate(self.blocks):
            job = jobs[j]
            step0[g] = len(tiles)
            for x in range(job.b):
                tiles.append(dict(j=j, x=x, g=g, i=i, h=len(tiles), first=(i == 0), last=(i == job.n - 1),
                                  nsub=(1 if (i == 0 and job.rem <= 16) else 2), slot=job.slot[x]))
        H = len(tiles)
        step0[G] = H
        T = lambda h: tiles[h] if 0 <= h < H else None
        start, m = {}, 0
        for h in range(-1, H + 3):
            start[h] = m
            if T(h + 1): m += 4 * T(h + 1)['nsub']
            if T(h - 1): m += 9
        self.start = start
        N3 = [None] * 3
        b0 = jobs[0].b
        self.par = par = G & 1
        self.cur, self.prev = 0, None
        two = len(jobs) > 1

        self.dma('K', 0, N3, static=True, silent=True)
        self.q_load(0, 0, silent=True)
        self.dma('V', 0, N3, static=True, silent=True)
        self.q_load(0, 1, silent=True)
        n0 = len(self.P.ops)
        for x in range(2, b0):
            if cfg.fair:
                self.add('s_barrier', 'bar', ['barseq', 'vmorder'], ['barseq', 'vmorder'])
            self.q_load(0, x)
        if cfg.fair:
            self.add('s_barrier', 'bar', ['barseq', 'vmorder'], ['barseq', 'vmorder'])
        self.dma_off(1, None, 'static')
        self.dma('K', 1, N3, static=True)
        self.dma('V', 1, N3, static=True)
        if cfg.pf == 2:
            self.add('global_load_dword v127, v126, s[68:69]%s' % cfg.pf2_flags, 'vld', ['vmorder'], [V(127), 'vmorder'])
        for o in self.P.ops[n0:]:
            o.space = 0
        self.add('', 'mark', ['vmorder'], ['issued'])
        self.stamp(1, ['issued'], chain='issued')
        self.job_masks(0)
        for j in range(1, len(jobs)):
            self.job_setup(j)
        for x in range(b0):
            if x == 0:
                self.stamp(2, [jobs[0].raw[0].sub(0, 4), 'issued'], chain='issued')
            self.q_conv(0, x, after=['issued'] + ([('conv', x - 1)] if x else []))
            self.add('', 'mark', [jobs[0].raw[x]], [('conv', x)]).eager = True
            self.force = []
            if x == 0:
                self.barrier([('K', 0), ('V', 0)], [], None, after=[('conv', 0)])
                self.read_k(0, lambda f: None)
                self.read_v(0, lambda n: None)
            if x == 1:
                self.dma_off(2, None, 'static')
                self.dma('K', 2, N3, static=True, after=[('conv', 1)])
                self.dma('V', 2, N3, static=True)
        nxt = 3
        nfree = 8 - par
        pubd = 1
        evmode = False
        conv_at = {}
        if two:
            for x in range(jobs[1].b):
                conv_at[step0[jobs[0].n] + x - 3] = x
            gq = jobs[0].n - 4
            gq -= (gq + 1 + par) & 1

        self.qk(T(0))
        for h in range(0, H + 1):
            t = T(h)
            b = start[h]
            newstep = t and t['x'] == 0
            if newstep:
                g = t['g']
                W = start[step0[g + 1]] - b
                w0 = b - 2
                if g + 1 < G:
                    turn = (g + 1 + par) & 1 == 0
                    if turn or pubd <= g + 1:
                        hi = g + 2 if (turn and g >= cfg.k0) else g + 1
                        pub = [(w, k) for k in range(pubd, hi + 1) for w in 'KV']
                        pubd = hi + 1
                        fr = [(w, k) for k in (g - 1, g) if k >= 0 for w in 'KV'] if turn else []
                        regular = turn and g > cfg.k0
                        cap = None
                        if regular:
                            cap = 16 if self.lastdma >= g - 1 else 0
                        self.barrier(pub, fr, start[min(b0 - 2, 1)] if g == 0 else w0 - 2, cap)
                        if turn:
                            nfree += 2
                            if regular:
                                self.add(';;LOOPPOINT', 'loop', ['barseq'], [], rel=w0 - 1)
                            self.ring_advance(w0)
            if h % 8 == 0:
                self.add('; ---- unit %d' % h, 'mark', [], [], rel=b - 1, dl=b - 1)
            if T(h + 1):
                self.qk(T(h + 1))
            if newstep and g + 1 < G:
                a = (W - 10) / 24.0
                self.read_k(g + 1, (lambda f: None) if g == 0 else (lambda f: w0 + int(f * a)))
            if h in conv_at:
                self.q_conv(1, conv_at[h], rel=b - 8)
            if T(h - 1):
                self.pv(T(h - 1))
                if T(h - 1)['last']:
                    self.epilogue(T(h - 1))
            if newstep and g + 1 < G:
                self.read_v(g + 1, (lambda n: None) if g == 0 else (lambda n: w0 + int((8 + n) * a)))
                e = start[step0[g + 1] - 1] - 1
                self.add('', 'pseudo', [KF[(g + 1) & 1]], [], rel=e, dl=e)
                e = start[step0[g + 1]] - 4
                self.add('', 'pseudo', [VF[(g + 1) & 1]], [], rel=e, dl=e)
                todo = []
                while nxt < min(G, nfree, g + 8) and len(todo) < 2:
                    todo.append(nxt)
                    nxt += 1
                steady = todo == [g + 7] and g > cfg.k0
                nd = 4 * len(todo)
                pos = [w0 + 3 + int((k + 0.5) * (W - 8) / max(nd, 1)) for k in range(nd)]
                for q, k in enumerate(todo):
                    p = pos[4 * q:4 * q + 4]
                    mode = 'static'
                    if steady:
                        mode = 'add'
                        if two and t['j'] == 0 and (evmode or k <= jobs[0].n):
                            if not evmode:
                                self.event_init(k, 0)
                                evmode = True
                            mode = 'event'
                    self.dma_off(k, p[0] - 3, mode)
                    self.dma('K', k, [p[0] - 2, p[0], p[1]], static=not steady)
                    self.dma('V', k, [p[2] - 2, p[2], p[3]], static=not steady)
                    self.lastdma = g
                if two and g == 1:
                    self.job_masks(1, rel=b)
                if two and g == gq:
                    nq = 4 * jobs[1].b
                    for x in range(jobs[1].b):
                        self.q_load(1, x, rel=lambda tt, x=x: w0 + 5 + int((4 * x + tt) * (2 * W - 16) / nq))
            if t:
                self.sm(t)
            if h == b0:
                self.stamp(3, [], rel=b)
            if t and t['first'] and t['j'] == 1 and t['x'] == 0:
                self.stamp(4, [], rel=start[h - jobs[0].b])
            if t and t['j'] == 1 and t['i'] == 1 and t['x'] == 0:
                self.stamp(5, [], rel=b)
            if h == H - jobs[-1].b:
                self.stamp(6, [], rel=b)
        ops = self.P.schedule()
        F = Finalizer()
        lines = [l for l in F.run(ops) if l]
        self.F = F
        return lines


def fold(lines, tag):
    chunks, cur = [], []
    for l in lines:
        if l == ';;LOOPPOINT':
            chunks.append(cur)
            cur = []
        else:
            cur.append(l)
    chunks.append(cur)
    keyf = lambda c: '\n'.join(x for x in c if not x.startswith(';'))
    keys = [keyf(c) for c in chunks]
    out, i, nl, desc = [], 0, 0, []
    while i < len(chunks):
        r = 1
        while cfg.fold and 0 < i and i + r < len(chunks) - 1 and keys[i + r] == keys[i]:
            r += 1
        if r > 1:
            lab = 'L_%s_loop%d' % (tag, nl)
            nl += 1
            out.append('s_mov_b32 %s, %d' % (sCNT, r - 1))
            out.append('%s:' % lab)
            out += [x for x in chunks[i] if not x.startswith(';')]
            out.append('s_sub_u32 %s, %s, 1' % (sCNT, sCNT))
            out.append('s_cbranch_scc0 %s' % lab)
        else:
            out += chunks[i]
        desc.append('%dx%d' % (r, len(chunks[i])))
        i += r
    return out, ' '.join(desc)


def common_head(types):
    L = []
    a = L.append
    a('s_cmp_ge_u32 s2, 256')
    a('s_cbranch_scc1 L_exit')
    a('s_load_dwordx4 s[4:7], s[0:1], 0')
    a('s_load_dwordx2 s[8:9], s[0:1], 16')
    a('s_load_dwordx2 s[10:11], s[0:1], 32')
    if cfg.stamps:
        a('s_load_dwordx2 %s, s[0:1], 48' % sDBG.sub(0, 2))
        a('s_memtime s[72:73]')
        a('s_memrealtime s[92:93]')
    if cfg.pf == 1:
        a('s_getpc_b64 s[62:63]')
        a('L_pf:')
        a('s_lshr_b32 s3, s2, 3')
        a('v_lshl_add_u32 v6, v0, 5, s3')
        a('v_lshlrev_b32 v6, 7, v6')
        a('v_min_u32 v6, L_end%d-L_pf-4, v6' % (len(types) - 1))
        a('global_load_dword v127, v6, s[62:63]%s' % cfg.pf_flags)
    a('s_lshr_b32 s13, s2, 4')
    if cfg.pf == 2:
        a('s_getpc_b64 s[68:69]')
        a('L_pf:')
        first = 0
        for ti, t in enumerate(types):
            if ti == 0:
                a('s_mov_b32 s70, L_type0-L_pf')
            else:
                a('s_cmp_ge_u32 s13, %d' % first)
                a('s_cselect_b32 s70, L_type%d-L_pf, s70' % ti)
            first += t['cnt']
        a('v_lshrrev_b32 v6, 2, v0')
        a('v_lshl_add_u32 v6, v6, 7, s70')
        a('global_load_dword v127, v6, s[68:69]%s' % cfg.pf_flags)
        a('v_lshl_add_u32 v126, v0, 7, s70')
    a('v_lshrrev_b32 v1, 6, v0')
    a('v_and_b32 v0, 63, v0')
    a('v_readfirstlane_b32 %s, v1' % sW)
    first = 0
    for ti, t in enumerate(types):
        j = t['jobs'][0]
        par = sum(x.n for x in t['jobs']) & 1
        p0 = (CU[j.seq] + j.q0) | CU[j.seq] << 16
        p1 = CU[j.seq + 1] | j.b << 16 | (j.qstride // 64) << 20 | first << 24 | par << 28
        if ti == 0:
            a('s_mov_b32 s44, 0x%x' % p0)
            a('s_mov_b32 s45, 0x%x' % p1)
        else:
            a('s_cmp_ge_u32 s13, %d' % first)
            a('s_cselect_b32 s44, 0x%x, s44' % p0)
            a('s_cselect_b32 s45, 0x%x, s45' % p1)
        first += t['cnt']
    a('v_and_b32 v2, 15, v0')
    a('v_lshrrev_b32 %s, 4, v0' % vG)
    a('v_lshl_add_u32 v6, v1, 3, %s' % vG)
    for t in range(2):
        if t:
            a('v_add_u32 v6, 4, v6')
        a('v_and_b32 v7, 15, v6')
        a('v_xor_b32 v7, v7, v2')
        a('v_lshlrev_b32 v7, 4, v7')
        a('v_lshl_add_u32 %s, v6, 12, v7' % vDK.sub(t))
    a('v_subrev_u32 %s, 0x400, %s' % (vDK.sub(1), vDK.sub(1)))
    a('v_lshlrev_b32 v3, 4, v2')
    a('v_lshl_add_u32 %s, %s, 12, v3' % (vQO.sub(0), vG))
    for t in range(1, 4):
        a('v_add_u32 %s, 0x%x, %s' % (vQO.sub(t), 4 * t * ROW, vQO.sub(0)))
    a('s_and_b32 s3, s2, 7')
    a('s_bfe_u32 s62, s2, 0x10003')
    a('s_lshl_b32 s3, s3, %d' % (9 if cfg.hmap == 0 else 8))
    a('s_lshl_b32 s62, s62, %d' % (8 if cfg.hmap == 0 else 11))
    a('s_add_u32 s3, s3, s62')
    a('s_lshr_b32 %s, s44, 16' % sOFF)
    a('s_lshl_b32 %s, %s, 12' % (sOFF, sOFF))
    a('s_and_b32 s44, s44, 0xffff')
    a('s_bfe_u32 s62, s45, 0x40018')
    a('s_sub_u32 s46, s13, s62')
    a('s_bfe_u32 s62, s45, 0x40014')
    a('s_mul_i32 s62, s62, s46')
    a('s_lshl_b32 s62, s62, 2')
    a('s_bfe_u32 s63, s45, 0x40010')
    a('s_mul_i32 s63, s63, %s' % sW)
    a('s_add_u32 s62, s62, s63')
    a('s_lshl_b32 s62, s62, 4')
    a('s_add_u32 s44, s44, s62')
    a('s_lshl_b32 s44, s44, 12')
    a('s_and_b32 s62, s45, 0xffff')
    a('s_lshl_b32 s62, s62, 12')
    a('s_sub_u32 %s, s62, 0x%x' % (sQS(0).sub(2), ROW - 256))
    a('s_mov_b32 %s, 0x20000' % sQS(0).sub(3))
    a('s_lshl_b32 %s, %s, 11' % (sWB, sW))
    a('s_lshr_b32 s62, s45, 28')
    a('s_lshl_b32 s62, s62, 13')
    a('s_add_u32 s62, s62, %s' % sWB)
    a('s_mov_b32 m0, s62')
    for d in (sKS, sVS):
        a('s_mov_b32 %s, 0x%x' % (d.sub(2), (TOT - 1) * ROW + 256))
        a('s_mov_b32 %s, 0x20000' % d.sub(3))
    a('s_add_u32 s63, s44, 0x%x' % (16 * ROW))
    if cfg.stamps == 2:
        a('s_memtime s[80:81]')
    a('s_waitcnt lgkmcnt(0)')
    for d, p in ((sKS, 6), (sQS(0), 4), (sVS, 8)):
        a('s_add_u32 %s, s%d, s3' % (d.sub(0), p))
        a('s_addc_u32 %s, s%d, 0' % (d.sub(1), p + 1))
    for t in range(2):
        a('buffer_load_dwordx4 %s, %s, %s offen%s%s lds' % (vDK.sub(t), sKS, sOFF, ' offset:1024' if t else '', cfg.ld_flags))
    for t in range(4):
        a('buffer_load_dwordx4 %s, %s, %s, s44 offen%s' % (OSET[0].sub(4 * t, 4), vQO.sub(t), sQS(0), cfg.q_flags))
    if cfg.stamps == 2:
        a('s_memtime s[82:83]')
    a('s_add_u32 m0, s62, 0x%x' % VBASE)
    a('v_bfe_u32 v8, v0, 2, 2')
    a('v_and_b32 v9, 3, v0')
    a('v_lshl_add_u32 v6, v1, 3, v8')
    a('v_lshlrev_b32 v7, 4, v9')
    a('v_lshl_add_u32 v7, %s, 6, v7' % vG)
    a('v_lshl_add_u32 %s, v6, 12, v7' % vDV.sub(0))
    a('v_xor_b32 %s, 32, %s' % (vDV.sub(1), vDV.sub(0)))
    a('v_add_u32 %s, 0x%x, %s' % (vDV.sub(1), 4 * ROW - 1024, vDV.sub(1)))
    if cfg.pf == 2:
        a('v_add_u32 v126, 0x2000, v126')
        a('v_min_u32 v126, L_end%d-L_pf-4, v126' % (len(types) - 1))
    a('s_add_u32 %s, s10, s3' % sOS(0).sub(0))
    a('s_addc_u32 %s, s11, 0' % sOS(0).sub(1))
    a('s_mov_b32 %s, %s' % (sOS(0).sub(2), sQS(0).sub(2)))
    a('s_mov_b32 %s, 0x20000' % sOS(0).sub(3))
    a('s_mov_b32 %s, %s' % (sCUR, sWB))
    a('s_mov_b32 %s, 0x4000' % sMASK)
    a('s_mov_b32 %s, 0x%x' % (sC.sub(0), CSCALE))
    a('s_mov_b32 %s, 0x%x' % (sC.sub(1), CSCALE))
    a('s_mov_b32 %s, 0x%x' % (sTHR, LTHR))
    a('s_mov_b32 %s, 0' % sFLAG)
    a('v_xor_b32 v6, %s, v2' % vG)
    a('v_lshlrev_b32 v6, 4, v6')
    a('v_lshl_add_u32 %s, v2, 8, v6' % vKA.sub(0))
    for s in range(1, 4):
        a('v_xor_b32 %s, 0x%x, %s' % (vKA.sub(s), 64 * s, vKA.sub(0)))
    a('v_and_b32 v6, 1, %s' % vG)
    a('v_lshlrev_b32 v6, 5, v6')
    a('v_lshl_add_u32 v6, v9, 3, v6')
    a('v_lshl_add_u32 v6, v8, 6, v6')
    a('v_lshl_add_u32 v6, %s, 10, v6' % vG)
    a('v_add_u32 %s, 0x%x, v6' % (vVA.sub(0), VBASE))
    a('v_xor_b32 %s, 32, %s' % (vVA.sub(1), vVA.sub(0)))
    a('v_mul_u32_u24 v6, 0x%x, v1' % STG_W)
    a('v_add_u32 v6, 0x%x, v6' % STG)
    a('v_mul_u32_u24 v7, 272, v2')
    a('v_add_u32 v7, v7, v6')
    a('v_lshl_add_u32 %s, %s, 4, v7' % (vQF, vG))
    a('v_lshl_add_u32 %s, %s, 3, v7' % (vOW, vG))
    a('v_mul_u32_u24 v7, 272, %s' % vG)
    a('v_add3_u32 %s, v7, v6, v3' % vQL)
    a('v_cmp_eq_u32 vcc, 0, v9')
    a('v_mov_b32 v6, 0x3f803f80')
    a('s_nop 0')
    a('v_cndmask_b32 %s, 0, v6, vcc' % ONES.sub(0))
    for k in range(1, 4):
        a('v_mov_b32 %s, %s' % (ONES.sub(k), ONES.sub(0)))
    if cfg.fair:
        a('s_barrier')
    for t in range(2):
        a('buffer_load_dwordx4 %s, %s, %s offen%s%s lds' % (vDV.sub(t), sVS, sOFF, ' offset:1024' if t else '', cfg.ld_flags))
    for t in range(4):
        a('buffer_load_dwordx4 %s, %s, %s, s63 offen%s' % (OSET[1].sub(4 * t, 4), vQO.sub(t), sQS(0), cfg.q_flags))
    if cfg.stamps == 2:
        a('s_memtime s[84:85]')
    acc = 0
    for ti, t in enumerate(types):
        acc += t['cnt']
        if ti < len(types) - 1:
            a('s_cmp_lt_u32 s13, %d' % acc)
            a('s_cbranch_scc0 L_not%d' % ti)
        a('s_getpc_b64 s[62:63]')
        a('L_pc%d:' % ti)
        a('s_add_u32 s62, s62, L_type%d-L_pc%d' % (ti, ti))
        a('s_addc_u32 s63, s63, 0')
        a('s_setpc_b64 s[62:63]')
        a('L_not%d:' % ti)
    return L


def stamp_tail(ti):
    L = []
    a = L.append
    a('s_memtime s[86:87]')
    a('s_waitcnt vmcnt(0)')
    a('s_memtime s[88:89]')
    a('s_memrealtime s[94:95]')
    a('s_waitcnt lgkmcnt(0)')
    if cfg.diag:
        if cfg.diagtype >= 0 and cfg.diagtype != ti:
            return L
        if cfg.diag == 1:
            a('s_mov_b32 s62, 10000')
        elif cfg.diag == 2:
            a('s_sub_u32 s62, s94, s92')
            a('s_lshl_b32 s62, s62, 3')
        else:
            a('s_sub_u32 s62, s%d, s72' % (72 + 2 * (cfg.diag - 10)))
            a('s_lshr_b32 s62, s62, %d' % cfg.diagshift)
            a('s_add_u32 s62, s62, 5000')
        a('s_min_u32 s62, s62, 60000')
        a('L_spin%d:' % ti)
        a('s_memrealtime s[96:97]')
        a('s_waitcnt lgkmcnt(0)')
        a('s_sub_u32 s63, s96, s92')
        a('s_cmp_lt_u32 s63, s62')
        a('s_cbranch_scc1 L_spin%d' % ti)
        return L
    a('s_mov_b32 s66, 0x100000')
    a('s_mov_b32 s67, 0x20000')
    a('s_lshl_b32 s62, s2, 2')
    a('s_add_u32 s62, s62, %s' % sW)
    a('s_lshl_b32 s62, s62, 6')
    a('v_mov_b32 v1, 0')
    for i, r in enumerate([72 + 2 * k for k in range(9)] + [92, 94]):
        a('v_mov_b32 v2, s%d' % r)
        a('buffer_store_dword v2, v1, s[64:67], s62 offen offset:%d' % (4 * i))
    return L


def make_types():
    J = Job
    return [
        dict(cnt=4, jobs=[J(0, 4, 0, 256)]),
        dict(cnt=3, jobs=[J(6, 4, 0, 256)]),
        dict(cnt=1, jobs=[J(6, 3, 768), J(5, 2, 0)]),
        dict(cnt=1, jobs=[J(3, 3, 512), J(7, 3, 384)]),
        dict(cnt=1, jobs=[J(4, 4, 0), J(5, 3, 256)]),
        dict(cnt=2, jobs=[J(4, 3, 256, 192), J(7, 3, 0, 192)]),
        dict(cnt=1, jobs=[J(3, 4, 0), J(1, 2, 384)]),
        dict(cnt=1, jobs=[J(3, 4, 256), J(5, 2, 128)]),
        dict(cnt=2, jobs=[J(2, 4, 0, 256), J(1, 3, 0, 192)]),
    ]


MACROS = r"""
; ---- shorthands (register numbers only; every tuple is 4 registers unless noted)
.macro QK d,a,b,c       ; S^T tile: v[d] = K frag a[a] x Q frag a[b] + v[c]
v_mfma_f32_16x16x32_bf16 v[\d:\d+3], a[\a:\a+3], a[\b:\b+3], v[\c:\c+3]
.endm
.macro QZ d,a,b         ; same, accumulator starts at 0
v_mfma_f32_16x16x32_bf16 v[\d:\d+3], a[\a:\a+3], a[\b:\b+3], 0
.endm
.macro PV d,a,b         ; O^T tile: v[d] += V^T frag a[a] x P frag v[b]
v_mfma_f32_16x16x32_bf16 v[\d:\d+3], a[\a:\a+3], v[\b:\b+3], v[\d:\d+3]
.endm
.macro PZ d,a,b
v_mfma_f32_16x16x32_bf16 v[\d:\d+3], a[\a:\a+3], v[\b:\b+3], 0
.endm
.macro LS d,a,b         ; row sums: a[d] += ones v[a] x P frag v[b]
v_mfma_f32_16x16x32_bf16 a[\d:\d+3], v[\a:\a+3], v[\b:\b+3], a[\d:\d+3]
.endm
.macro LZ d,a,b
v_mfma_f32_16x16x32_bf16 a[\d:\d+3], v[\a:\a+3], v[\b:\b+3], 0
.endm
.macro RK d,a,o         ; 16-byte LDS read into a[d]
ds_read_b128 a[\d:\d+3], v\a offset:\o
.endm
.macro RV d,a,o         ; transposing LDS read into a[d:d+1]
ds_read_b64_tr_b16 a[\d:\d+1], v\a offset:\o
.endm
.macro EX d
v_exp_f32 v\d, v\d
.endm
.macro CV d,a,b
v_cvt_pk_bf16_f32 v\d, v\a, v\b
.endm
.macro PM d,r,h         ; v[d:d+1] *= v[r+h]
v_pk_mul_f32 v[\d:\d+1], v[\d:\d+1], v[\r:\r+1] op_sel:[0,\h] op_sel_hi:[1,\h]
.endm
""".strip().split('\n')


def compact(lines):
    import re
    T = r'\[(\d+):\d+\]'
    rules = [
        (MF + r' v%s, a%s, a%s, v%s$' % (T, T, T, T), r'QK \1,\2,\3,\4'),
        (MF + r' v%s, a%s, a%s, 0$' % (T, T, T), r'QZ \1,\2,\3'),
        (MF + r' v%s, a%s, v%s, v\[\1:\d+\]$' % (T, T, T), r'PV \1,\2,\3'),
        (MF + r' v%s, a%s, v%s, 0$' % (T, T, T), r'PZ \1,\2,\3'),
        (MF + r' a%s, v%s, v%s, a\[\1:\d+\]$' % (T, T, T), r'LS \1,\2,\3'),
        (MF + r' a%s, v%s, v%s, 0$' % (T, T, T), r'LZ \1,\2,\3'),
        (r'ds_read_b128 a%s, v(\d+) offset:(\d+)$' % T, r'RK \1,\2,\3'),
        (r'ds_read_b64_tr_b16 a%s, v(\d+) offset:(\d+)$' % T, r'RV \1,\2,\3'),
        (r'v_exp_f32 v(\d+), v\1$', r'EX \1'),
        (r'v_cvt_pk_bf16_f32 v(\d+), v(\d+), v(\d+)$', r'CV \1,\2,\3'),
        (r'v_pk_mul_f32 v%s, v\[\1:\d+\], v%s op_sel:\[0,(\d)\] op_sel_hi:\[1,\3\]$' % (T, T), r'PM \1,\2,\3'),
    ]
    rules = [(re.compile(a), b) for a, b in rules]
    out = []
    for l in lines:
        for rx, rep in rules:
            m = rx.match(l)
            if m:
                l = m.expand(rep)
                break
        out.append(l)
    i = out.index('.text')
    return out[:i + 1] + MACROS + out[i + 1:]


def check_cover(types):
    cov = [[0] * LEN[s] for s in range(8)]
    for t in types:
        for sub in range(t['cnt']):
            for j in t['jobs']:
                q = j.q0 + sub * j.qstride
                for r in range(q, min(q + 64 * j.b, j.L)):
                    cov[j.seq][r] += 1
    assert all(c == 1 for s in cov for c in s)
    assert sum(t['cnt'] for t in types) == 16


def generate(types, verbose=True):
    check_cover(types)
    out = []
    a = out.append
    a('; @launch grid=(256,1,1) block=(256,1,1) lds=%d' % LDS_BYTES)
    a('.amdgcn_target "amdgcn-amd-amdhsa--gfx950"')
    a('.text')
    a('.globl %s' % NAME)
    a('.p2align 8')
    a('.type %s,@function' % NAME)
    a('%s:' % NAME)
    out += common_head(types)
    a('L_exit:')
    a('s_endpgm')
    first = 0
    for ti, t in enumerate(types):
        a('.p2align 7')
        a('L_type%d:' % ti)
        if cfg.only < 0 or cfg.only == ti:
            B = Builder(t['jobs'])
            lines = B.build()
            fl, desc = fold(lines, 't%d' % ti)
            out += fl
            if cfg.stamps:
                out += stamp_tail(ti)
            if verbose:
                ov = B.P.overflow
                print('type %d: %d -> %d lines, mfma %d, est cycles %d, overflow %d in %d gaps, nops %d waits %d [%s]' % (
                    ti, len(lines), len(fl), B.P.nmfma, B.P.end_time, sum(x[1] for x in ov), len(ov), B.F.nops, B.F.nwaits, desc),
                    file=sys.stderr)
        first += t['cnt']
        a('s_endpgm')
        a('L_end%d:' % ti)
    if cfg.compact:
        out = compact(out)
        a = out.append
    a('.section .rodata,"a"')
    a('.p2align 6')
    a('.amdhsa_kernel %s' % NAME)
    a('  .amdhsa_next_free_vgpr 512')
    a('  .amdhsa_next_free_sgpr 102')
    a('  .amdhsa_accum_offset 256')
    a('  .amdhsa_group_segment_fixed_size 0')
    a('  .amdhsa_kernarg_size 56')
    a('  .amdhsa_user_sgpr_count 2')
    a('  .amdhsa_user_sgpr_kernarg_segment_ptr 1')
    a('  .amdhsa_system_sgpr_workgroup_id_x 1')
    a('.end_amdhsa_kernel')
    return '\n'.join(out) + '\n'


if __name__ == '__main__':
    for o in sys.argv[2:]:
        k, v = o.split('=')
        setattr(cfg, k, v if k.endswith('flags') else int(v))
    txt = generate(make_types())
    open(sys.argv[1], 'w').write(txt)
```

```python
BIG = 1 << 40
GAP = 16
WS_D = 8
WS_COV = 6
WS_CWAR = 3


class Reg:
    def __init__(self, f, b, n=1):
        self.f, self.b, self.n = f, b, n

    def __str__(self):
        if self.n == 1:
            return '%s%d' % (self.f, self.b)
        return '%s[%d:%d]' % (self.f, self.b, self.b + self.n - 1)

    def names(self):
        return ['%s%d' % (self.f, i) for i in range(self.b, self.b + self.n)]

    def sub(self, off, n=1):
        assert 0 <= off and off + n <= self.n, (str(self), off, n)
        return Reg(self.f, self.b + off, n)


def V(b, n=1): return Reg('v', b, n)
def A(b, n=1): return Reg('a', b, n)
def S(b, n=1): return Reg('s', b, n)


def names(lst):
    out = []
    for x in lst:
        if isinstance(x, Reg):
            out += x.names()
        elif isinstance(x, list):
            out += names(x)
        else:
            out.append(x)
    return out


VEC = ('valu', 'trans', 'pk')
LDS = ('ds', 'dsw')
VMEM = ('dma', 'vld', 'vst')
NOEMIT = ('pseudo', 'mark')
COST = dict(valu=4, pk=4, trans=8, ds=4, dsw=12, dma=12, vld=12, vst=12, salu=4, bar=4, pseudo=0, mark=0, loop=8)

SPACE = dict(dsw=32, dma=56, vld=56, vst=56)
PATH = dict(dsw='lw', dma='ta', vld='ta', vst='ta')


class Op:
    def __init__(self, text, kind, rd=(), wr=(), rel=None, dl=None, srcc=(), sub=None, cost=None, lat=None):
        self.text, self.kind = text, kind
        self.rd, self.wr = names(rd), names(wr)
        self.srcc = names(srcc)
        self.rel, self.dl, self.sub = rel, dl, sub
        self.cost = COST.get(kind, 4) if cost is None else cost
        self.lat = lat
        self.silent = False
        self.space = SPACE.get(kind, 0)
        self.vmcap = None
        self.eager = False
        self.preds = {}
        self.succs = []
        self.time = None
        self.idx = None


def edge_lat(p, c, typ, reg):
    k = p.kind
    if reg == 'vmorder':
        return 4
    if typ == 'raw' or typ == 'waw':
        if p.lat is not None and typ == 'raw':
            return p.lat
        if k == 'mfma':
            if c.kind == 'mfma':
                return 0 if (set(c.srcc) == set(p.wr) or typ == 'waw') else 40
            return 40
        if k == 'trans':
            return 16 if c.kind == 'mfma' else 12
        if k in ('valu', 'pk'):
            if c.kind == 'mfma' or c.sub == 'perm':
                return 12
            if c.kind in LDS or c.kind in VMEM:
                return 12
            return 8 if typ == 'raw' else 4
        if k == 'ds':
            return 96
        if k == 'salu':
            return 12 if c.kind in VMEM else 4
        if k == 'bar':
            return 8
        if k in NOEMIT:
            return 0
        return 4
    if k == 'mfma' and c.kind in VEC and set(p.srcc) & set(c.wr):
        return 20
    if k == 'vst':
        return 12
    return 0


class Prog:
    def __init__(self):
        self.ops = []
        self.lastw = {}
        self.readers = {}
        self.nmfma = 0

    def add(self, op):
        op.idx = len(self.ops)

        def dep(p, typ, r):
            if p is op:
                return
            l = edge_lat(p, op, typ, r)
            if p not in op.preds or op.preds[p] < l:
                op.preds[p] = l
        for r in op.rd:
            if r in self.lastw:
                dep(self.lastw[r], 'raw', r)
        for r in op.wr:
            if r in self.lastw:
                dep(self.lastw[r], 'waw', r)
            for p in self.readers.get(r, ()):
                dep(p, 'war', r)
        for r in op.rd:
            self.readers.setdefault(r, []).append(op)
        for r in op.wr:
            self.lastw[r] = op
            self.readers[r] = []
        if op.kind == 'mfma':
            op.m = self.nmfma
            self.nmfma += 1
        self.ops.append(op)
        return op

    def schedule(self):
        ops = self.ops
        for o in ops:
            for p in o.preds:
                p.succs.append(o)
        endt = GAP * (self.nmfma + 1)
        for o in reversed(ops):
            if o.kind == 'mfma':
                o.D = GAP * o.m
                continue
            d = endt + 4 * o.idx
            for s in o.succs:
                d = min(d, s.D - max(s.preds[o], 4 if o.cost else 0))
            if o.dl is not None:
                d = min(d, GAP * o.dl + 8)
            o.D = d
        mf = [o for o in ops if o.kind == 'mfma']
        npend = {o: len(o.preds) for o in ops}
        avail = set(o for o in ops if npend[o] == 0 and o.kind != 'mfma')
        out = []
        st = dict(t=0, lastkind=None, pos=0, tm=-BIG, lw=-BIG, ta=-BIG)
        key = lambda o: (o.D, o.idx)

        def ready_time(o):
            r = -BIG
            for p, l in o.preds.items():
                x = p.time + l
                if p.kind == 'mfma' and l >= 20 and o.kind not in NOEMIT:
                    short = (WS_D if l > 20 else WS_CWAR) - (st['pos'] - p.pos - 1)
                    if short > 0:
                        x = max(x, st['t'] + 4 * short)
                r = max(r, x)
            if o.kind == 'pk':
                r = max(r, st['tm'] + 24)
            if o.kind in PATH:
                r = max(r, st[PATH[o.kind]])
            return r

        def place(o, t):
            o.time = t
            o.pos = st['pos']
            if o.kind not in NOEMIT:
                st['pos'] += 1
            if o.kind in PATH:
                st[PATH[o.kind]] = t + o.space
            out.append(o)
            avail.discard(o)
            for s in o.succs:
                npend[s] -= 1
                if npend[s] == 0 and s.kind != 'mfma':
                    avail.add(s)

        def penalty(o):
            lk = st['lastkind']
            if o.kind in LDS + VMEM and lk in VEC:
                return 8
            if o.kind in VMEM and lk == 'salu':
                return 8
            return 0

        def emit(o):
            t = max(st['t'] + penalty(o), ready_time(o))
            place(o, t)
            st['t'] = t + o.cost
            if o.kind not in NOEMIT:
                st['lastkind'] = o.kind

        def needed_set(targets):
            need = set()
            stack = [p for t in targets for p in t.preds if p.time is None]
            while stack:
                p = stack.pop()
                if p in need:
                    continue
                assert p.kind != 'mfma', 'backbone order violates dependences: needs %s' % p.text
                need.add(p)
                stack += [q for q in p.preds if q.time is None]
            return need

        def released(o, g):
            return o.rel is None or o.rel <= g

        def forced(need, g):
            while need:
                t = st['t']
                c = [o for o in avail if o in need]
                rdy = [o for o in c if ready_time(o) <= t + penalty(o)]
                eg = [o for o in avail if o.eager and released(o, g) and ready_time(o) <= t + penalty(o)]
                if eg:
                    o = min(eg, key=key)
                elif rdy:
                    o = min(rdy, key=lambda o: (o.D + 2 * penalty(o), o.idx))
                else:
                    nxt = min(ready_time(o) for o in c)
                    oth = [o for o in avail if o not in need and released(o, g) and o.kind not in ('bar', 'loop', 'pseudo')
                           and ready_time(o) <= t and t + penalty(o) + o.cost <= nxt + 4]
                    if oth:
                        o = min(oth, key=key)
                    else:
                        o = min(c, key=lambda o: (ready_time(o), o.D, o.idx))
                emit(o)
                need.discard(o)

        for o in ops:
            if o.silent:
                place(o, -1000)
        self.overflow = []
        for m, mo in enumerate(mf):
            tm = st['tm']
            forced(needed_set([mo]), m - 1)
            rt = ready_time(mo)
            while rt > st['t'] + 3:
                oth = [o for o in avail if released(o, m - 1) and o.kind not in ('bar', 'loop', 'pseudo')
                       and ready_time(o) <= st['t'] and st['t'] + penalty(o) + o.cost <= max(rt, tm + GAP)]
                if not oth:
                    break
                emit(min(oth, key=key))
            t = max(st['t'], tm + GAP, rt)
            if m > 0 and t > tm + GAP:
                self.overflow.append((m, t - tm - GAP))
            place(mo, t)
            tm = st['tm'] = t
            st['lastkind'] = 'mfma'
            end = tm + GAP
            st['t'] = tm + 4

            def cands(kinds, slack=0):
                return [o for o in avail if o.kind in kinds and released(o, m) and ready_time(o) <= st['t'] + slack]
            lp = cands(('loop',), BIG)
            if lp:
                place(lp[0], st['t'])
                st['t'] = end + 4
                continue
            shadow = False
            while True:
                c = cands(NOEMIT, 4)
                if not c:
                    break
                o = min(c, key=key)
                if o.kind == 'pseudo':
                    shadow = True
                place(o, st['t'])
            br = cands(('bar',), 4)
            vm = cands(VMEM, 4) if not (br or shadow) else []
            if br:
                st['t'] = tm + 8
                emit(br[0])
                st['t'] = end
                continue
            if vm:
                o = min(vm, key=key)
                urgent = [x for x in cands(('trans', 'valu', 'ds'), 4) if x.D < o.D and x.D <= GAP * (m + 1)]
                if not urgent:
                    st['t'] = tm + 8
                    emit(o)
                    continue
            if not shadow:
                c = [o for o in cands(('salu',)) if o.cost <= 4 or o.D <= GAP * (m + 4)]
                if c:
                    o = min(c, key=key)
                    place(o, st['t'])
                    st['t'] += o.cost
            st['t'] = max(st['t'], tm + 8)
            room = end - st['t']
            tr = [o for o in cands(('trans', 'dsw')) + [x for x in cands(('valu',)) if x.cost > 4] if min(o.cost, 8) <= room]
            ds = sorted(cands(('ds',)), key=key) if room >= 4 else []
            va = sorted([x for x in cands(('valu',), 4) if x.cost == 4], key=key) if room >= 4 else []
            us = sorted([o for o in cands(("salu",)) if o.D <= GAP * (m + 2) and o.cost <= room], key=key)
            small = sorted(ds[:2] + va[:2] + us[:1], key=key)[:room // 4]
            pick_tr = False
            if tr:
                bt = min(tr, key=key)
                if not small:
                    pick_tr = True
                elif len(small) < 2:
                    pick_tr = bt.D <= small[0].D or small[0].D > GAP * (m + 2)
                else:
                    pick_tr = bt.D <= small[0].D
            if pick_tr:
                emit(bt)
            else:
                small.sort(key=lambda o: (o.kind != 'ds', ready_time(o) > st['t'], o.D, o.idx))
                for o in small:
                    if max(st['t'], ready_time(o)) + o.cost <= end:
                        emit(o)
                if st['t'] + 4 <= end:
                    c = [o for o in cands(('valu',)) if st['t'] + o.cost <= end]
                    if c:
                        emit(min(c, key=key))
        rest = set(o for o in ops if o.time is None)
        forced(rest, BIG)
        self.end_time = st['t']
        self.out = out
        return out


class Finalizer:
    def __init__(self):
        self.lines = []
        self.lg = []
        self.vm = []
        self.hist = []
        self.pos = 0
        self.nops = 0
        self.nwaits = 0
        self.capped = set()

    def _need(self, op):
        touched = set(op.rd) | set(op.wr)
        nl = nv = None
        for i, w in enumerate(self.lg):
            if touched & w:
                nl = len(self.lg) - i - 1
        for i, w in enumerate(self.vm):
            if touched & w:
                nv = len(self.vm) - i - 1
        if op.vmcap is not None and id(op) not in self.capped:
            nv = op.vmcap if nv is None else min(nv, op.vmcap)
            nl = 0
            self.capped.add(id(op))
        return nl, nv

    def _wait(self, nl, nv):
        parts = []
        if nv is not None:
            nv = min(nv, 63)
            parts.append('vmcnt(%d)' % nv)
            del self.vm[:max(0, len(self.vm) - nv)]
        if nl is not None:
            nl = min(nl, 15)
            parts.append('lgkmcnt(%d)' % nl)
            del self.lg[:max(0, len(self.lg) - nl)]
        self.lines.append('s_waitcnt ' + ' '.join(parts))
        self.pos += 1
        self.nwaits += 1

    def _hazard(self, c):
        need = 0
        rd, wr = set(c.rd), set(c.wr)
        for p, pp in reversed(self.hist):
            dist = self.pos - pp - 1
            if dist >= 20:
                break
            pw = set(p.wr)
            ws = 0
            if p.kind in VEC:
                if c.kind == 'mfma' and pw & rd:
                    ws = max(ws, 2)
                if p.kind == 'trans' and c.kind in VEC and pw & rd:
                    ws = max(ws, 1)
                if c.sub == 'perm' and pw & (rd | wr):
                    ws = max(ws, 2)
                if c.sub == 'rdlane' and pw & rd:
                    ws = max(ws, 1)
                sg = set(x for x in pw if isinstance(x, str) and (x[0] == 's' or x == 'vcc'))
                if sg & rd:
                    if c.kind in VEC or c.kind == 'salu':
                        ws = max(ws, 2)
                    elif c.kind in VMEM:
                        ws = max(ws, 5)
            if p.kind == 'mfma':
                if c.kind == 'mfma':
                    cc = set(c.srcc)
                    if pw & (rd - cc):
                        ws = max(ws, WS_D)
                    if pw & cc and cc != pw:
                        ws = max(ws, WS_COV)
                    if pw & wr and wr != pw:
                        ws = max(ws, WS_D)
                elif pw & (rd | wr):
                    ws = max(ws, WS_D)
                if c.kind in VEC and set(p.srcc) & wr:
                    ws = max(ws, WS_CWAR)
            if p.kind == 'salu' and 'm0' in pw and c.kind == 'dma':
                ws = max(ws, 1)
            if p.kind == 'vst' and set(p.rd) & wr - {'vmorder'}:
                ws = max(ws, 2)
            need = max(need, ws - dist)
        return need

    def run(self, ops):
        n = len(ops)
        for i, op in enumerate(ops):
            if op.kind in ('mark', 'loop'):
                self.lines.append(op.text)
                continue
            if op.silent:
                if op.kind in VMEM:
                    self.vm.append(set(op.wr) - {'vmorder'})
                continue
            nl, nv = self._need(op)
            if nl is not None or nv is not None:
                self._wait(nl, nv)
            if op.kind != 'pseudo':
                h = self._hazard(op)
                if h > 0:
                    self.lines.append('s_nop %d' % (h - 1))
                    self.pos += h
                    self.nops += 1
                tl = op.text.split('\n')
                self.lines += tl
                self.pos += len(tl) - 1
                self.hist.append((op, self.pos))
                if len(self.hist) > 64:
                    del self.hist[:32]
                self.pos += 1
                if op.kind in LDS:
                    self.lg.append(set(op.wr) if op.kind == 'ds' else set())
                elif op.kind in VMEM:
                    self.vm.append(set(op.wr) - {'vmorder'})
            if op.kind == 'mfma':
                nl = nv = None
                j = i + 1
                while j < n:
                    o = ops[j]
                    if o.time > op.time + GAP + 8:
                        break
                    if o.kind not in ('mark', 'loop'):
                        a, b = self._need(o)
                        if a is not None:
                            nl = a if nl is None else min(nl, a)
                        if b is not None:
                            nv = b if nv is None else min(nv, b)
                    if o.kind == 'mfma':
                        break
                    j += 1
                if nl is not None or nv is not None:
                    self._wait(nl, nv)
        return self.lines
```

```python
import sys, math, struct
from sched16 import *

NAME = 'standalone__varlen_attn_packed__ragged_kernel'
CU = [0, 992, 1451, 1933, 2583, 3189, 3578, 4512, 5082]
LEN = [CU[i + 1] - CU[i] for i in range(8)]
TOT = CU[-1]
ROW = 4096
MF = 'v_mfma_f32_16x16x32_bf16'


class Cfg:
    stamps = 0
    ld_flags = ''
    q_flags = ' nt'
    store_flags = ' nt'
    fold = 1
    pf = 1
    pf_flags = ''
    pf2_flags = ''
    only = -1
    cu_flags = '2222'
    npre = 0
    tier_flags = '000000000'
    pads = 1
    align = 1
    diag = 0
    diagtype = -1
    diagshift = 1
    compact = 1
    hmap = 0
    fair = 1
cfg = Cfg()


def f2u(x):
    return struct.unpack('<I', struct.pack('<f', x))[0]


CSCALE = f2u(math.log2(math.e) / math.sqrt(128.0))
LTHR = f2u(2.0 ** 40)

TMP = V(0, 12)
vHM = V(12, 2)
vQF, vQL = V(14), V(15)
SSET = [V(16, 8), V(24, 8)]
PSET = [V(32, 4), V(36, 4)]
NMSET = [V(40 + 4 * i, 4) for i in range(4)]
ONES = V(56, 4)
vKA = V(60, 4)
vVA = V(64, 2)
vDK = V(66, 2)
vDV = V(68, 2)
vOW = V(70)
vG = V(71)
vQO = V(72, 4)
RCP = V(76, 4)
RAW2 = V(80, 48)
OSET = [V(128 + 32 * i, 32) for i in range(4)]
KF = [A(0, 32), A(32, 32)]
VF = [A(64, 32), A(96, 32)]
QSET = [A(128 + 16 * i, 16) for i in range(7)]
LSET = [A(240 + 4 * i, 4) for i in range(4)]

sW, sSUB = S(12), S(46)
sC = S(14, 2)
sKS, sVS = S(16, 4), S(20, 4)
def sQS(j): return S(24 + 8 * j, 4)
def sOS(j): return S(28 + 8 * j, 4)
sOFF = S(40)
sCUR, sPB, sMASK = S(41), S(42), S(43)
def sQROW(j): return S(44 + j)
sT = [S(48 + i) for i in range(6)]
sFLAG, sTHR, sCNT, sEV = S(54), S(55), S(56), S(57)
sINC, sSPEC = S(58, 2), S(60, 2)
sHI = S(71)
sWB = S(47)
sDBG = S(64, 4)

VBASE = 0x10000
STG = 0x20000
STG_W = 4352
LDS_BYTES = STG + 4 * STG_W
GRAY = [0, 0x4000, 0xC000, 0x8000]


class Job:
    def __init__(self, seq, b, q0, qstride=0):
        self.seq, self.b, self.q0, self.qstride = seq, b, q0, qstride
        self.L = LEN[seq]
        self.n = (self.L + 31) // 32
        self.rem = self.L - 32 * (self.n - 1)


class Builder:
    def __init__(self, jobs):
        self.jobs = jobs
        self.P = Prog()
        self.tmpi = self.sti = self.tmi = 0
        self.force, self.fence = [], False
        qi = 0
        for j, job in enumerate(jobs):
            job.Q = QSET[qi:qi + job.b]
            qi += job.b
            sh = 0 if j == 0 else jobs[0].b % 4
            job.slot = [(x + sh) % 4 for x in range(job.b)]
            if j == 0:
                job.raw = [OSET[job.slot[x]].sub(0, 16) for x in range(job.b)]
            else:
                job.raw = [RAW2.sub(16 * x, 16) for x in range(job.b)]

    def add(self, *a, **k):
        return self.P.add(Op(*a, **k))

    def valu(self, text, rd, wr, **k):
        return self.add(text, 'valu', rd, wr, **k)

    def salu(self, text, rd, wr, **k):
        return self.add(text, 'salu', rd, wr, **k)

    def tmp2(self):
        r = TMP.sub(2 * (self.tmpi % 4), 2)
        self.tmpi += 1
        return r

    def tmpm(self):
        r = TMP.sub(8 + 2 * (self.tmi % 2), 2)
        self.tmi += 1
        return r

    def chain(self, ops):
        for p, o in zip(ops, ops[1:]):
            o.preds[p] = max(o.preds.get(p, 0), p.space)

    def stmp(self):
        r = sT[self.sti % len(sT)]
        self.sti += 1
        return r

    def stamp(self, i, after=(), rel=None, chain=None, force=False):
        if cfg.stamps >= 3 and not force:
            return
        if cfg.stamps == 1 or (cfg.stamps == 2 and i < 4) or force:
            r = S(72 + 2 * i, 2)
            self.add('s_memtime %s' % r, 'salu', list(after), [r] + ([chain] if chain else []), rel=rel, dl=rel if rel is not None else -100)

    def job_setup(self, j, rel=None):
        job = self.jobs[j]
        nrec = (CU[job.seq + 1] - 1) * ROW + 256
        q = sQROW(j)
        assert j > 0
        self.salu('s_mul_i32 %s, %s, 0x%x' % (q, sW, 16 * job.b * ROW), [sW], [q], rel=rel)
        if job.qstride:
            t = self.stmp()
            self.salu('s_mul_i32 %s, %s, 0x%x' % (t, sSUB, job.qstride * ROW), [sSUB], [t], rel=rel)
            self.salu('s_add_u32 %s, %s, %s' % (q, q, t), [q, t], [q], rel=rel)
        self.salu('s_add_u32 %s, %s, 0x%x' % (q, q, (CU[job.seq] + job.q0) * ROW), [q], [q], rel=rel)
        for d, d0 in ((sQS(j), sQS(0)), (sOS(j), sOS(0))):
            if j:
                self.salu('s_mov_b64 %s, %s' % (d.sub(0, 2), d0.sub(0, 2)), [d0.sub(0, 2)], [d.sub(0, 2)], rel=rel)
            self.salu('s_mov_b32 %s, 0x%x' % (d.sub(2), nrec), [], [d.sub(2)], rel=rel)
            self.salu('s_mov_b32 %s, 0x20000' % d.sub(3), [], [d.sub(3)], rel=rel)

    def job_masks(self, j, rel=None):
        job = self.jobs[j]
        r = job.rem % 16
        job.G = [(r + 3) // 4, r // 4]
        if r == 0:
            return
        for k in range(2):
            if 0 < job.G[k] < 4 and (k == 0 or job.G[0] != job.G[1]):
                h = vHM.sub(k)
                self.valu('v_subrev_u32 %s, %d, %s' % (h, job.G[k], vG), [vG], [h], rel=rel)
                self.valu('v_ashrrev_i32 %s, 31, %s' % (h, h), [h], [h], rel=rel)
                self.valu('v_not_b32 %s, %s' % (h, h), [h], [h], rel=rel)
                self.valu('v_and_b32 %s, 0xff800000, %s' % (h, h), [h], [h], rel=rel)

    def rowoff(self, g):
        j, i = self.blocks[g]
        job = self.jobs[j]
        return (CU[job.seq] + (0 if i == 0 else job.rem + 32 * (i - 1))) * ROW

    def slot(self, g):
        v = g + self.par
        return GRAY[(v >> 1) % 4] + (v & 1) * 8192

    def dma_off(self, g, rel, mode):
        if mode == 'static':
            self.salu('s_mov_b32 %s, 0x%x' % (sOFF, self.rowoff(g)), [], [sOFF], rel=rel, dl=rel)
        elif mode == 'add':
            self.salu('s_add_u32 %s, %s, 0x%x' % (sOFF, sOFF, self.rowoff(g) - self.rowoff(g - 1)), [sOFF], [sOFF], rel=rel, dl=rel)
        else:
            self.salu('s_sub_u32 %s, %s, 1\ns_cselect_b64 %s, %s, %s' % (sEV, sEV, sINC, sSPEC, sINC), [sEV, sINC, sSPEC], [sEV, sINC],
                      rel=rel - 2, dl=rel - 1, cost=8)
            self.salu('s_add_u32 %s, %s, %s' % (sOFF, sOFF, sINC.sub(0)), [sOFF, sINC.sub(0)], [sOFF], rel=rel, dl=rel)
            self.salu('s_mov_b32 %s, %s' % (sINC.sub(0), sINC.sub(1)), [sINC.sub(1)], [sINC.sub(0)], rel=rel + 4, dl=rel + 6)
            self.salu('s_mov_b32 %s, 0x%x' % (sINC.sub(1), 32 * ROW), [], [sINC.sub(1)], rel=rel + 5, dl=rel + 7)

    def event_init(self, gfirst, rel):
        g2 = self.jobs[0].n
        self.salu('s_mov_b32 %s, %d' % (sEV, g2 - gfirst), [], [sEV], rel=rel)
        for k in range(2):
            self.salu('s_mov_b32 %s, 0x%x' % (sINC.sub(k), 32 * ROW), [], [sINC.sub(k)], rel=rel)
            self.salu('s_mov_b32 %s, 0x%x' % (sSPEC.sub(k), (self.rowoff(g2 + k) - self.rowoff(g2 + k - 1)) & 0xffffffff), [], [sSPEC.sub(k)], rel=rel)

    def dma(self, which, g, rels, static=False, after=(), silent=False):
        base = VBASE if which == 'V' else 0
        n0 = len(self.P.ops)
        if static:
            self.salu('s_add_u32 m0, %s, 0x%x' % (sWB, base + self.slot(g)), [sWB], ['m0'], rel=rels[0], dl=rels[0])
        else:
            assert self.slot(g) & 0xc000 == self.prev
            self.salu('s_add_u32 m0, %s, 0x%x' % (sPB, base + (self.slot(g) & 0x2000)), [sPB], ['m0'], rel=rels[0], dl=rels[0])
        srd, vo = (sKS, vDK) if which == 'K' else (sVS, vDV)
        for t in range(2):
            self.add('buffer_load_dwordx4 %s, %s, %s offen%s%s lds' % (vo.sub(t), srd, sOFF, ' offset:1024' if t else '', cfg.ld_flags),
                     'dma', [vo.sub(t), srd, sOFF, 'm0', ('free', which, self.slot(g)), 'vmorder'] + list(after),
                     [('dma', which, g, t), 'vmorder'], rel=rels[1 + t], dl=rels[1 + t], lat=4)
        for o in self.P.ops[n0:]:
            o.silent = silent

    def barrier(self, pub, free, rel, vmcap=None, after=()):
        rd, wr = ['barseq'] + list(after), ['barseq']
        for which, g in pub:
            rd += [('dma', which, g, 0), ('dma', which, g, 1)]
            wr += [('pub', which, g)]
        for which, g in free:
            rd += self.rdtok[(which, g)]
            wr += [('free', which, self.slot(g))]
        self.add('s_barrier', 'bar', rd, wr, rel=rel, dl=rel).vmcap = vmcap

    def ring_advance(self, rel):
        self.prev = self.cur
        self.cur = GRAY[(GRAY.index(self.cur) + 1) % 4]
        self.salu('s_mov_b32 %s, %s' % (sPB, sCUR), [sCUR], [sPB], rel=rel, dl=rel)
        self.salu('s_xor_b32 %s, %s, %s' % (sCUR, sCUR, sMASK), [sCUR, sMASK], [sCUR], rel=rel, dl=rel)
        for r in [vKA.sub(i) for i in range(4)] + [vVA.sub(i) for i in range(2)]:
            self.valu('v_xor_b32 %s, %s, %s' % (r, sMASK, r), [r, sMASK], [r])
        self.salu('s_xor_b32 %s, %s, 0xc000' % (sMASK, sMASK), [sMASK], [sMASK])

    def rdoff(self, g):
        assert self.cur == 0 or self.slot(g) & 0xc000 == self.cur
        return self.slot(g) - self.cur

    def read_k(self, g, relf):
        j, i = self.blocks[g]
        nsub = 1 if (i == 0 and self.jobs[j].rem <= 16) else 2
        toks = []
        for u in range(nsub):
            for s in range(4):
                f = 4 * u + s
                d = KF[g & 1].sub(4 * f, 4)
                tok = ('rd', 'K', g, f)
                toks.append(tok)
                r = relf(f)
                self.add('ds_read_b128 %s, %s offset:%d' % (d, vKA.sub(s), self.rdoff(g) + u * 4096), 'ds',
                         [vKA.sub(s), ('pub', 'K', g)], [d, tok], rel=r, dl=None if r is None else r + 2)
        self.rdtok[('K', g)] = toks

    def read_v(self, g, relf):
        toks = []
        for db in range(8):
            for jj in range(2):
                n = 2 * db + jj
                d = VF[g & 1].sub(4 * db + 2 * jj, 2)
                tok = ('rd', 'V', g, n)
                toks.append(tok)
                r = relf(n)
                self.add('ds_read_b64_tr_b16 %s, %s offset:%d' % (d, vVA.sub(db & 1), self.rdoff(g) + jj * 4096 + (db >> 1) * 256),
                         'ds', [vVA.sub(db & 1), ('pub', 'V', g)], [d, tok], rel=r, dl=None if r is None else r + 2)
        self.rdtok[('V', g)] = toks

    def q_load(self, j, x, rel=None, after=(), silent=False):
        job = self.jobs[j]
        n0 = len(self.P.ops)
        so = self.stmp()
        self.salu('s_add_u32 %s, %s, 0x%x' % (so, sQROW(j), 16 * x * ROW), [sQROW(j)], [so], rel=None if rel is None else rel(0) - 2)
        for t in range(4):
            T = job.raw[x].sub(4 * t, 4)
            r = None if rel is None else rel(t)
            self.add('buffer_load_dwordx4 %s, %s, %s, %s offen%s' % (T, vQO.sub(t), sQS(j), so, cfg.q_flags), 'vld',
                     [vQO.sub(t), sQS(j), so, 'vmorder'] + list(after), [T, 'vmorder'], rel=r, dl=r, lat=4)
        for o in self.P.ops[n0:]:
            o.silent = silent

    def q_conv(self, j, x, rel=None, after=()):
        job = self.jobs[j]
        after = list(after)
        for t in range(4):
            T = job.raw[x].sub(4 * t, 4)
            for e in range(4):
                y = T.sub(e)
                p = self.tmp2()
                self.valu('v_lshlrev_b32 %s, 16, %s' % (p.sub(0), y), [y] + after, [p.sub(0)], rel=rel)
                self.valu('v_and_b32 %s, %s, %s' % (p.sub(1), sHI, y), [y] + after, [p.sub(1)], rel=rel)
                self.add('v_pk_mul_f32 %s, %s, %s' % (p, p, sC), 'pk', [p, sC], [p], rel=rel)
                self.force.append(self.valu('v_cvt_pk_bf16_f32 %s, %s, %s' % (y, p.sub(0), p.sub(1)), [p], [y], rel=rel))
        self.add('', 'mark', [], ['stgx']).eager = True
        ids = []
        n0 = len(self.P.ops)
        for t in range(4):
            T = job.raw[x].sub(4 * t, 4)
            ids.append(('stg', j, x, 'q', t))
            self.add('ds_write_b128 %s, %s offset:%d' % (vQL, T, t * 4 * 272), 'dsw', [vQL, T, 'stgx'], [ids[-1]], cost=20).space = 52
        self.chain(self.P.ops[-4:])
        for s in range(4):
            d = job.Q[x].sub(4 * s, 4)
            self.add('ds_read_b128 %s, %s offset:%d' % (d, vQF, s * 64), 'ds', [vQF, 'stgx'] + ids, [d], lat=120)
        for o in self.P.ops[n0:]:
            o.eager = True

    def mfma(self, d, a, b, c):
        o = self.add('%s %s, %s, %s, %s' % (MF, d, a, b, c if c else '0'), 'mfma', [a, b] + ([c] if c else []), [d],
                     srcc=[c] if c else [])
        if self.fence:
            for p in self.force:
                o.preds.setdefault(p, 4)
            self.force = []
            self.fence = False

    def qk(self, t):
        job = self.jobs[t['j']]
        if t['h'] in self.qfence:
            assert not self.force
            self.force, self.fence = self.qfence.pop(t['h']), True
        for u in range(t['nsub']):
            d = SSET[t['h'] % 2].sub(4 * u, 4)
            for s in range(4):
                c = d if s else (None if t['first'] else NMSET[t['slot']])
                self.mfma(d, KF[t['g'] & 1].sub(16 * u + 4 * s, 4), job.Q[t['x']].sub(4 * s, 4), c)

    def pv(self, t):
        Pr = PSET[t['h'] % 2]
        L = LSET[t['slot']]
        self.fence = True
        if t['last']:
            self.mfma(L, ONES, Pr, None if t['first'] else L)
        for db in range(8):
            d = OSET[t['slot']].sub(4 * db, 4)
            self.mfma(d, VF[t['g'] & 1].sub(4 * db, 4), Pr, None if t['first'] else d)
        if not t['last']:
            self.mfma(L, ONES, Pr, None if t['first'] else L)

    def sm(self, t):
        job = self.jobs[t['j']]
        Sr, Pr, NM = SSET[t['h'] % 2], PSET[t['h'] % 2], NMSET[t['slot']]
        used = list(range(8))
        if t['first']:
            nr = 4 * t['nsub']
            tt = self.tmpm()
            a, b = tt.sub(0), tt.sub(1)
            self.valu('v_max3_f32 %s, %s, %s, %s' % (a, Sr.sub(0), Sr.sub(1), Sr.sub(2)), [Sr.sub(0, 3)], [a])
            if nr == 4:
                self.valu('v_max_f32 %s, %s, %s' % (a, a, Sr.sub(3)), [a, Sr.sub(3)], [a])
            else:
                self.valu('v_max3_f32 %s, %s, %s, %s' % (b, Sr.sub(4), Sr.sub(5), Sr.sub(6)), [Sr.sub(4, 3)], [b])
                self.valu('v_max3_f32 %s, %s, %s, %s' % (a, a, Sr.sub(3), Sr.sub(7)), [a, Sr.sub(3), Sr.sub(7)], [a])
                self.valu('v_max_f32 %s, %s, %s' % (a, a, b), [tt], [a])
            self.valu('v_mov_b32 %s, %s' % (b, a), [a], [b])
            self.valu('v_permlane32_swap_b32 %s, %s' % (a, b), [tt], [tt], sub='perm', cost=8)
            self.valu('v_max_f32 %s, %s, %s' % (a, a, b), [tt], [a])
            self.valu('v_mov_b32 %s, %s' % (b, a), [a], [b])
            self.valu('v_permlane16_swap_b32 %s, %s' % (a, b), [tt], [tt], sub='perm', cost=8)
            self.valu('v_min_f32_e64 %s, -%s, -%s' % (NM.sub(0), a, b), [tt], [NM.sub(0)])
            r16 = job.rem % 16
            up = t['nsub'] - 1 if r16 else -1
            src, used = {}, []
            made = {}
            for r in range(nr):
                if r // 4 != up:
                    src[r] = NM.sub(0)
                else:
                    k = 0 if (r % 4) < (r16 % 4) or job.G[0] == job.G[1] else 1
                    if job.G[k] == 0:
                        continue
                    if job.G[k] == 4:
                        src[r] = NM.sub(0)
                    else:
                        if k not in made:
                            made[k] = tt.sub(k)
                            self.valu('v_add_f32 %s, %s, %s' % (made[k], NM.sub(0), vHM.sub(k)), [NM.sub(0), vHM.sub(k)], [made[k]])
                        src[r] = made[k]
                used.append(r)
            for r in used:
                y = Sr.sub(r)
                self.valu('v_add_f32 %s, %s, %s' % (y, src[r], y), [y, src[r]], [y])
            for r in range(1, 4):
                self.valu('v_mov_b32 %s, %s' % (NM.sub(r), NM.sub(0)), [NM.sub(0)], [NM.sub(r)])
        for r in range(8):
            y = Sr.sub(r)
            if r in used:
                self.add('v_exp_f32 %s, %s' % (y, y), 'trans', [y], [y])
            if r % 2 == 1:
                p, lo = Pr.sub(r // 2), Sr.sub(r - 1)
                if r in used:
                    self.valu('v_cvt_pk_bf16_f32 %s, %s, %s' % (p, lo, y), [lo, y], [p])
                elif r - 1 in used:
                    self.valu('v_cvt_pk_bf16_f32 %s, %s, 0' % (p, lo), [lo], [p])
                else:
                    self.valu('v_mov_b32 %s, 0' % p, [], [p], rel=self.start[t['h']])

    def epilogue(self, t):
        j, x, sl = t['j'], t['x'], t['slot']
        job = self.jobs[j]
        O, rc, L = OSET[sl], RCP.sub(sl), LSET[sl].sub(0)
        self.valu('v_accvgpr_read_b32 %s, %s' % (rc, L), [L], [rc])
        self.valu('v_cmp_nge_f32 vcc, %s, %s' % (sTHR, rc), [sTHR, rc], ['vcc'])
        st = self.stmp()
        self.salu('s_cmp_lg_u64 vcc, 0\ns_cselect_b32 %s, %d, 0' % (st, 1 << (4 * j + x)), ['vcc'], [st], cost=8)
        self.salu('s_or_b32 %s, %s, %s' % (sFLAG, sFLAG, st), [sFLAG, st], [sFLAG])
        self.add('v_rcp_f32 %s, %s' % (rc, rc), 'trans', [rc], [rc])
        rp, h = V(rc.b & ~1, 2), rc.b & 1
        dl = self.start[t['h'] + 2]
        for db in range(8):
            src = O.sub(4 * db, 4)
            for e in range(2):
                y = src.sub(2 * e, 2)
                self.force.append(self.add('v_pk_mul_f32 %s, %s, %s op_sel:[0,%d] op_sel_hi:[1,%d]' % (y, y, rp, h, h), 'pk', [y, rc], [y]))
            for e in range(2):
                y = src.sub(2 * e, 2)
                o = self.valu('v_cvt_pk_bf16_f32 %s, %s, %s' % (src.sub(e), y.sub(0), y.sub(1)), [y], [src.sub(e)])
                if db < 2:
                    self.force.append(o)
        self.add('', 'mark', [], ['stgx']).eager = True
        ids = []
        n0 = len(self.P.ops)
        for db in range(8):
            ids.append(('stg', j, x, 'o', db))
            self.add('ds_write_b64 %s, %s offset:%d' % (vOW, O.sub(4 * db, 2), db * 32), 'dsw', [vOW, O.sub(4 * db, 2), 'stgx'], [ids[-1]],
                     dl=dl + 2 * db)
        self.chain(self.P.ops[-8:])
        so = self.stmp()
        self.salu('s_add_u32 %s, %s, 0x%x' % (so, sQROW(j), 16 * x * ROW), [sQROW(j)] + ids[:1], [so])
        for tt in range(4):
            d = job.Q[x].sub(4 * tt, 4)
            self.add('ds_read_b128 %s, %s offset:%d' % (d, vQL, tt * 4 * 272), 'ds', [vQL, 'stgx'] + ids, [d], dl=dl + 16, lat=120)
        for tt in range(4):
            d = job.Q[x].sub(4 * tt, 4)
            self.add('buffer_store_dwordx4 %s, %s, %s, %s offen%s' % (d, vQO.sub(tt), sOS(j), so, cfg.store_flags), 'vst',
                     [d, vQO.sub(tt), sOS(j), so], [], lat=4, dl=dl + 26 + 4 * tt)
        for o in self.P.ops[n0:]:
            o.eager = True

    def build(self):
        jobs = self.jobs
        self.blocks = [(j, i) for j, job in enumerate(jobs) for i in range(job.n)]
        G = len(self.blocks)
        self.rdtok = {}
        tiles, step0 = [], {}
        for g, (j, i) in enumerate(self.blocks):
            job = jobs[j]
            step0[g] = len(tiles)
            for x in range(job.b):
                tiles.append(dict(j=j, x=x, g=g, i=i, h=len(tiles), first=(i == 0), last=(i == job.n - 1),
                                  nsub=(1 if (i == 0 and job.rem <= 16) else 2), slot=job.slot[x]))
        H = len(tiles)
        step0[G] = H
        T = lambda h: tiles[h] if 0 <= h < H else None
        start, m = {}, 0
        for h in range(-1, H + 3):
            start[h] = m
            if T(h + 1): m += 4 * T(h + 1)['nsub']
            if T(h - 1): m += 9
        self.start = start
        N3 = [None] * 3
        b0 = jobs[0].b
        self.par = par = G & 1
        self.cur, self.prev = 0, None
        two = len(jobs) > 1

        self.dma('K', 0, N3, static=True, silent=True)
        self.q_load(0, 0, silent=True)
        self.dma('V', 0, N3, static=True, silent=True)
        self.q_load(0, 1, silent=True)
        later = [('Q', x) for x in range(2, b0)] + [('B', 1), ('B', 2)]

        def issue(after, eager):
            if not later:
                return
            kind, v = later.pop(0)
            n0 = len(self.P.ops)
            if kind == 'Q':
                self.q_load(0, v, after=after)
            else:
                self.dma_off(v, None, 'static')
                self.dma('K', v, N3, static=True, after=after)
                self.dma('V', v, N3, static=True)
            for o in self.P.ops[n0:]:
                o.eager = eager
                if not eager:
                    o.space = 0
        for k in range(cfg.npre):
            if cfg.fair:
                self.add('s_barrier', 'bar', ['barseq', 'vmorder'], ['barseq', 'vmorder'])
            issue([], False)
        self.add('', 'mark', ['vmorder'], ['issued'])
        self.stamp(1, ['issued'], chain='issued')
        self.job_masks(0)
        for j in range(1, len(jobs)):
            self.job_setup(j)
        self.qfence = {}
        for x in range(b0):
            prev = ['issued'] + ([('conv', x - 1)] if x else [])
            self.add('', 'pseudo', [jobs[0].raw[x].sub(0, 4)] + prev, [('arr', x)], rel=start[x - 2] if x >= 2 else None)
            if x == 0:
                self.stamp(2, [('arr', 0)], chain=('arr', 0))
            issue([('arr', x)], True)
            self.q_conv(0, x, after=[('arr', x)])
            self.add('', 'mark', [jobs[0].raw[x]], [('conv', x)]).eager = True
            self.qfence[x - 1] = self.force
            self.force = []
            if x == 0:
                self.barrier([('K', 0)], [], None, after=[('conv', 0)])
                n0 = len(self.P.ops)
                self.read_k(0, lambda f: None)
                for o in self.P.ops[n0 - 1:]:
                    o.eager = True
            if x == 1:
                self.barrier([('V', 0)], [], None, after=[('conv', 1)])
                self.P.ops[-1].eager = True
                self.read_v(0, lambda n: None)
        while later:
            issue([('conv', b0 - 1)], True)
        nxt = 3
        nfree = 8 - par
        pubd = 1
        evmode = False
        conv_at = {}
        if two:
            for x in range(jobs[1].b):
                conv_at[step0[jobs[0].n] + x - 3] = x
            gq = jobs[0].n - 4
            gq -= (gq + 1 + par) & 1

        if cfg.stamps == 3:
            for k in range(6):
                self.stamp(1 + k, [], rel=start[k - 1], force=True)
        if cfg.stamps == 4:
            h0 = (step0[jobs[0].n] - 3) if two else H - 5
            for k in range(6):
                self.stamp(1 + k, [], rel=start[h0 + k], force=True)
        if cfg.stamps == 5:
            for k in range(6):
                self.stamp(1 + k, [], rel=start[step0[k + 1]], force=True)
        self.qk(T(0))
        for h in range(0, H + 1):
            t = T(h)
            b = start[h]
            newstep = t and t['x'] == 0
            if newstep:
                g = t['g']
                W = start[step0[g + 1]] - b
                w0 = b - 2
                if g + 1 < G:
                    turn = (g + 1 + par) & 1 == 0
                    if turn or pubd <= g + 1:
                        hi = g + 2 if (turn and min(g + 4, G) <= nxt - (1 if g + 4 < G else 0)) else g + 1
                        pub = [(w, k) for k in range(pubd, hi + 1) for w in 'KV']
                        pubd = hi + 1
                        fr = [(w, k) for k in (g - 1, g) if k >= 0 for w in 'KV'] if turn else []
                        regular = turn and nxt >= min(G, g + 7) and g > 2
                        cap = None
                        if regular:
                            cap = 16 if self.lastdma >= g - 1 else 0
                        self.barrier(pub, fr, start[min(b0 - 2, 1)] if g == 0 else w0 - 2, cap)
                        if turn:
                            nfree += 2
                            if regular:
                                self.add(';;LOOPPOINT', 'loop', ['barseq'], [], rel=w0 - 1)
                            self.ring_advance(w0)
            if h % 8 == 0:
                self.add('; ---- unit %d' % h, 'mark', [], [], rel=b - 1, dl=b - 1)
            if T(h + 1):
                self.qk(T(h + 1))
            if newstep and g + 1 < G:
                a = (W - 10) / 24.0
                self.read_k(g + 1, (lambda f: None) if g == 0 else (lambda f: w0 + int(f * a)))
            if h in conv_at:
                self.q_conv(1, conv_at[h], rel=b - 8)
            if T(h - 1):
                self.pv(T(h - 1))
                if T(h - 1)['last']:
                    self.epilogue(T(h - 1))
            if newstep and g + 1 < G:
                self.read_v(g + 1, (lambda n: None) if g == 0 else (lambda n: w0 + int((8 + n) * a)))
                e = start[step0[g + 1] - 1] - 1
                self.add('', 'pseudo', [KF[(g + 1) & 1]], [], rel=e, dl=e)
                e = start[step0[g + 1]] - 4
                self.add('', 'pseudo', [VF[(g + 1) & 1]], [], rel=e, dl=e)
                todo = []
                while nxt < min(G, nfree, g + 8) and len(todo) < (int(cfg.cu_flags[g]) if g < len(cfg.cu_flags) else 2):
                    todo.append(nxt)
                    nxt += 1
                steady = todo == [g + 7] and g > 2
                nd = 4 * len(todo)
                pos = [w0 + 3 + int((k + 0.5) * (W - 8) / max(nd, 1)) for k in range(nd)]
                for q, k in enumerate(todo):
                    p = pos[4 * q:4 * q + 4]
                    mode = 'static'
                    if steady:
                        mode = 'add'
                        if two and t['j'] == 0 and (evmode or k <= jobs[0].n):
                            if not evmode:
                                self.event_init(k, 0)
                                evmode = True
                            mode = 'event'
                    self.dma_off(k, p[0] - 3, mode)
                    self.dma('K', k, [p[0] - 2, p[0], p[1]], static=not steady)
                    self.dma('V', k, [p[2] - 2, p[2], p[3]], static=not steady)
                    self.lastdma = g
                if two and g == 1:
                    self.job_masks(1, rel=b)
                if two and g == gq:
                    nq = 4 * jobs[1].b
                    for x in range(jobs[1].b):
                        self.q_load(1, x, rel=lambda tt, x=x: w0 + 5 + int((4 * x + tt) * (2 * W - 16) / nq))
            if t:
                self.sm(t)
            if h == b0:
                self.stamp(3, [], rel=b)
            if t and t['first'] and t['j'] == 1 and t['x'] == 0:
                self.stamp(4, [], rel=start[h - jobs[0].b])
            if t and t['j'] == 1 and t['i'] == 1 and t['x'] == 0:
                self.stamp(5, [], rel=b)
            if h == H - jobs[-1].b:
                self.stamp(6, [], rel=b)
        ops = self.P.schedule()
        self.est = [(o.text.split()[1], o.time) for o in ops if o.text.startswith('s_memtime')]
        F = Finalizer()
        lines = [l for l in F.run(ops) if l]
        self.F = F
        return lines


def fold(lines, tag):
    chunks, cur = [], []
    for l in lines:
        if l == ';;LOOPPOINT':
            chunks.append(cur)
            cur = []
        else:
            cur.append(l)
    chunks.append(cur)
    keyf = lambda c: '\n'.join(x for x in c if not x.startswith(';'))
    keys = [keyf(c) for c in chunks]
    out, i, nl, desc = [], 0, 0, []
    while i < len(chunks):
        r = 1
        while cfg.fold and 0 < i and i + r < len(chunks) - 1 and keys[i + r] == keys[i]:
            r += 1
        if r > 1:
            lab = 'L_%s_loop%d' % (tag, nl)
            nl += 1
            out.append('s_mov_b32 %s, %d' % (sCNT, r - 1))
            out.append('%s:' % lab)
            out += [x for x in chunks[i] if not x.startswith(';')]
            out.append('s_sub_u32 %s, %s, 1' % (sCNT, sCNT))
            out.append('s_cbranch_scc0 %s' % lab)
        else:
            out += chunks[i]
        desc.append('%dx%d' % (r, len(chunks[i])))
        i += r
    return out, ' '.join(desc)


def common_head(types):
    L = []
    a = L.append
    a('s_cmp_ge_u32 s2, 256')
    a('s_cbranch_scc1 L_exit')
    a('s_load_dwordx4 s[4:7], s[0:1], 0')
    a('s_load_dwordx2 s[8:9], s[0:1], 16')
    a('s_load_dwordx2 s[10:11], s[0:1], 32')
    if cfg.stamps:
        a('s_load_dwordx2 %s, s[0:1], 48' % sDBG.sub(0, 2))
        a('s_memtime s[72:73]')
        a('s_memrealtime s[92:93]')
    if cfg.pf == 1:
        a('s_getpc_b64 s[62:63]')
        a('L_pf:')
        a('s_lshr_b32 s3, s2, 3')
        a('v_lshl_add_u32 v6, v0, 5, s3')
        a('v_lshlrev_b32 v6, 7, v6')
        a('v_min_u32 v6, L_end%d-L_pf-4, v6' % (len(types) - 1))
        a('global_load_dword v127, v6, s[62:63]%s' % cfg.pf_flags)
    a('s_lshr_b32 s13, s2, 4')
    if cfg.pf == 2:
        a('s_getpc_b64 s[68:69]')
        a('L_pf:')
        first = 0
        for ti, t in enumerate(types):
            if ti == 0:
                a('s_mov_b32 s70, L_type0-L_pf')
            else:
                a('s_cmp_ge_u32 s13, %d' % first)
                a('s_cselect_b32 s70, L_type%d-L_pf, s70' % ti)
            first += t['cnt']
        a('v_lshrrev_b32 v6, 2, v0')
        a('v_lshl_add_u32 v6, v6, 7, s70')
        a('global_load_dword v127, v6, s[68:69]%s' % cfg.pf_flags)
        a('v_lshl_add_u32 v126, v0, 7, s70')
    a('v_lshrrev_b32 v1, 6, v0')
    a('v_and_b32 v0, 63, v0')
    a('v_readfirstlane_b32 %s, v1' % sW)
    first = 0
    for ti, t in enumerate(types):
        j = t['jobs'][0]
        par = sum(x.n for x in t['jobs']) & 1
        p0 = (CU[j.seq] + j.q0) | CU[j.seq] << 16
        p1 = CU[j.seq + 1] | j.b << 16 | (j.qstride // 64) << 20 | first << 24 | par << 28 | int(cfg.tier_flags[ti]) << 29
        if ti == 0:
            a('s_mov_b32 s44, 0x%x' % p0)
            a('s_mov_b32 s45, 0x%x' % p1)
        else:
            a('s_cmp_ge_u32 s13, %d' % first)
            a('s_cselect_b32 s44, 0x%x, s44' % p0)
            a('s_cselect_b32 s45, 0x%x, s45' % p1)
        first += t['cnt']
    a('v_and_b32 v2, 15, v0')
    a('v_lshrrev_b32 %s, 4, v0' % vG)
    a('v_lshl_add_u32 v6, v1, 3, %s' % vG)
    for t in range(2):
        if t:
            a('v_add_u32 v6, 4, v6')
        a('v_and_b32 v7, 15, v6')
        a('v_xor_b32 v7, v7, v2')
        a('v_lshlrev_b32 v7, 4, v7')
        a('v_lshl_add_u32 %s, v6, 12, v7' % vDK.sub(t))
    a('v_subrev_u32 %s, 0x400, %s' % (vDK.sub(1), vDK.sub(1)))
    a('v_lshlrev_b32 v3, 4, v2')
    a('v_lshl_add_u32 %s, %s, 12, v3' % (vQO.sub(0), vG))
    for t in range(1, 4):
        a('v_add_u32 %s, 0x%x, %s' % (vQO.sub(t), 4 * t * ROW, vQO.sub(0)))
    a('s_and_b32 s3, s2, 7')
    a('s_bfe_u32 s62, s2, 0x10003')
    a('s_lshl_b32 s3, s3, %d' % (9 if cfg.hmap == 0 else 8))
    a('s_lshl_b32 s62, s62, %d' % (8 if cfg.hmap == 0 else 11))
    a('s_add_u32 s3, s3, s62')
    a('s_lshr_b32 %s, s44, 16' % sOFF)
    a('s_lshl_b32 %s, %s, 12' % (sOFF, sOFF))
    a('s_and_b32 s44, s44, 0xffff')
    a('s_bfe_u32 s62, s45, 0x40018')
    a('s_sub_u32 s46, s13, s62')
    a('s_bfe_u32 s62, s45, 0x40014')
    a('s_mul_i32 s62, s62, s46')
    a('s_lshl_b32 s62, s62, 2')
    a('s_bfe_u32 s63, s45, 0x40010')
    a('s_mul_i32 s63, s63, %s' % sW)
    a('s_add_u32 s62, s62, s63')
    a('s_lshl_b32 s62, s62, 4')
    a('s_add_u32 s44, s44, s62')
    a('s_lshl_b32 s44, s44, 12')
    a('s_and_b32 s62, s45, 0xffff')
    a('s_lshl_b32 s62, s62, 12')
    a('s_sub_u32 %s, s62, 0x%x' % (sQS(0).sub(2), ROW - 256))
    a('s_mov_b32 %s, 0x20000' % sQS(0).sub(3))
    a('s_lshl_b32 %s, %s, 11' % (sWB, sW))
    a('s_bfe_u32 s62, s45, 0x1001c')
    a('s_lshl_b32 s62, s62, 13')
    a('s_add_u32 s62, s62, %s' % sWB)
    a('s_mov_b32 m0, s62')
    for d in (sKS, sVS):
        a('s_mov_b32 %s, 0x%x' % (d.sub(2), (TOT - 1) * ROW + 256))
        a('s_mov_b32 %s, 0x20000' % d.sub(3))
    a('s_add_u32 s63, s44, 0x%x' % (16 * ROW))
    if cfg.stamps == 2:
        a('s_memtime s[80:81]')
    a('s_waitcnt lgkmcnt(0)')
    for d, p in ((sKS, 6), (sQS(0), 4), (sVS, 8)):
        a('s_add_u32 %s, s%d, s3' % (d.sub(0), p))
        a('s_addc_u32 %s, s%d, 0' % (d.sub(1), p + 1))
    for t in range(2):
        a('buffer_load_dwordx4 %s, %s, %s offen%s%s lds' % (vDK.sub(t), sKS, sOFF, ' offset:1024' if t else '', cfg.ld_flags))
    if '1' in cfg.tier_flags or '3' in cfg.tier_flags:
        a('s_bitcmp1_b32 s45, 29')
        a('s_cbranch_scc0 L_tier1')
        a('s_waitcnt vmcnt(0)')
        a('L_tier1:')
    for t in range(4):
        a('buffer_load_dwordx4 %s, %s, %s, s44 offen%s' % (OSET[0].sub(4 * t, 4), vQO.sub(t), sQS(0), cfg.q_flags))
    if cfg.stamps == 2:
        a('s_memtime s[82:83]')
    a('s_add_u32 m0, s62, 0x%x' % VBASE)
    a('v_bfe_u32 v8, v0, 2, 2')
    a('v_and_b32 v9, 3, v0')
    a('v_lshl_add_u32 v6, v1, 3, v8')
    a('v_lshlrev_b32 v7, 4, v9')
    a('v_lshl_add_u32 v7, %s, 6, v7' % vG)
    a('v_lshl_add_u32 %s, v6, 12, v7' % vDV.sub(0))
    a('v_xor_b32 %s, 32, %s' % (vDV.sub(1), vDV.sub(0)))
    a('v_add_u32 %s, 0x%x, %s' % (vDV.sub(1), 4 * ROW - 1024, vDV.sub(1)))
    if cfg.pf == 2:
        a('v_add_u32 v126, 0x2000, v126')
        a('v_min_u32 v126, L_end%d-L_pf-4, v126' % (len(types) - 1))
    a('s_add_u32 %s, s10, s3' % sOS(0).sub(0))
    a('s_addc_u32 %s, s11, 0' % sOS(0).sub(1))
    a('s_mov_b32 %s, %s' % (sOS(0).sub(2), sQS(0).sub(2)))
    a('s_mov_b32 %s, 0x20000' % sOS(0).sub(3))
    a('s_mov_b32 %s, %s' % (sCUR, sWB))
    a('s_mov_b32 %s, 0x4000' % sMASK)
    a('s_mov_b32 %s, 0x%x' % (sC.sub(0), CSCALE))
    a('s_mov_b32 %s, 0x%x' % (sC.sub(1), CSCALE))
    a('s_mov_b32 %s, 0x%x' % (sTHR, LTHR))
    a('s_mov_b32 %s, 0' % sFLAG)
    a('s_mov_b32 %s, 0xffff0000' % sHI)
    a('v_xor_b32 v6, %s, v2' % vG)
    a('v_lshlrev_b32 v6, 4, v6')
    a('v_lshl_add_u32 %s, v2, 8, v6' % vKA.sub(0))
    for s in range(1, 4):
        a('v_xor_b32 %s, 0x%x, %s' % (vKA.sub(s), 64 * s, vKA.sub(0)))
    a('v_and_b32 v6, 1, %s' % vG)
    a('v_lshlrev_b32 v6, 5, v6')
    a('v_lshl_add_u32 v6, v9, 3, v6')
    a('v_lshl_add_u32 v6, v8, 6, v6')
    a('v_lshl_add_u32 v6, %s, 10, v6' % vG)
    a('v_add_u32 %s, 0x%x, v6' % (vVA.sub(0), VBASE))
    a('v_xor_b32 %s, 32, %s' % (vVA.sub(1), vVA.sub(0)))
    a('v_mul_u32_u24 v6, 0x%x, v1' % STG_W)
    a('v_add_u32 v6, 0x%x, v6' % STG)
    a('v_mul_u32_u24 v7, 272, v2')
    a('v_add_u32 v7, v7, v6')
    a('v_lshl_add_u32 %s, %s, 4, v7' % (vQF, vG))
    a('v_lshl_add_u32 %s, %s, 3, v7' % (vOW, vG))
    a('v_mul_u32_u24 v7, 272, %s' % vG)
    a('v_add3_u32 %s, v7, v6, v3' % vQL)
    a('v_cmp_eq_u32 vcc, 0, v9')
    a('v_mov_b32 v6, 0x3f803f80')
    a('s_nop 0')
    a('v_cndmask_b32 %s, 0, v6, vcc' % ONES.sub(0))
    for k in range(1, 4):
        a('v_mov_b32 %s, %s' % (ONES.sub(k), ONES.sub(0)))
    if '2' in cfg.tier_flags or '3' in cfg.tier_flags:
        a('s_bitcmp1_b32 s45, 30')
        a('s_cbranch_scc0 L_tier2')
        a('s_waitcnt vmcnt(0)')
        a('L_tier2:')
    if cfg.fair:
        a('s_barrier')
    for t in range(2):
        a('buffer_load_dwordx4 %s, %s, %s offen%s%s lds' % (vDV.sub(t), sVS, sOFF, ' offset:1024' if t else '', cfg.ld_flags))
    for t in range(4):
        a('buffer_load_dwordx4 %s, %s, %s, s63 offen%s' % (OSET[1].sub(4 * t, 4), vQO.sub(t), sQS(0), cfg.q_flags))
    if cfg.stamps == 2:
        a('s_memtime s[84:85]')
    acc = 0
    for ti, t in enumerate(types):
        acc += t['cnt']
        if ti < len(types) - 1:
            a('s_cmp_lt_u32 s13, %d' % acc)
            a('s_cbranch_scc0 L_not%d' % ti)
        a('s_getpc_b64 s[62:63]')
        a('L_pc%d:' % ti)
        a('s_add_u32 s62, s62, L_type%d-L_pc%d' % (ti, ti))
        a('s_addc_u32 s63, s63, 0')
        a('s_setpc_b64 s[62:63]')
        a('L_not%d:' % ti)
    return L


def stamp_tail(ti):
    L = []
    a = L.append
    a('s_memtime s[86:87]')
    a('s_waitcnt vmcnt(0)')
    a('s_memtime s[88:89]')
    a('s_memrealtime s[94:95]')
    a('s_waitcnt lgkmcnt(0)')
    if cfg.diag:
        if cfg.diagtype >= 0 and cfg.diagtype != ti:
            return L
        if cfg.diag == 1:
            a('s_mov_b32 s62, 10000')
        elif cfg.diag == 2:
            a('s_sub_u32 s62, s94, s92')
            a('s_lshl_b32 s62, s62, 3')
        else:
            a('s_sub_u32 s62, s%d, s72' % (72 + 2 * (cfg.diag - 10)))
            a('s_lshr_b32 s62, s62, %d' % cfg.diagshift)
            a('s_add_u32 s62, s62, 5000')
        a('s_min_u32 s62, s62, 60000')
        a('L_spin%d:' % ti)
        a('s_memrealtime s[96:97]')
        a('s_waitcnt lgkmcnt(0)')
        a('s_sub_u32 s63, s96, s92')
        a('s_cmp_lt_u32 s63, s62')
        a('s_cbranch_scc1 L_spin%d' % ti)
        return L
    a('s_mov_b32 s66, 0x100000')
    a('s_mov_b32 s67, 0x20000')
    a('s_lshl_b32 s62, s2, 2')
    a('s_add_u32 s62, s62, %s' % sW)
    a('s_lshl_b32 s62, s62, 6')
    a('v_mov_b32 v1, 0')
    for i, r in enumerate([72 + 2 * k for k in range(9)] + [92, 94]):
        a('v_mov_b32 v2, s%d' % r)
        a('buffer_store_dword v2, v1, s[64:67], s62 offen offset:%d' % (4 * i))
    return L


def make_types():
    J = Job
    return [
        dict(cnt=4, jobs=[J(0, 4, 0, 256)]),
        dict(cnt=3, jobs=[J(6, 4, 0, 256)]),
        dict(cnt=1, jobs=[J(6, 3, 768), J(5, 2, 0)]),
        dict(cnt=1, jobs=[J(3, 3, 512), J(7, 3, 384)]),
        dict(cnt=1, jobs=[J(4, 4, 0), J(5, 3, 256)]),
        dict(cnt=2, jobs=[J(4, 3, 256, 192), J(7, 3, 0, 192)]),
        dict(cnt=1, jobs=[J(3, 4, 0), J(1, 2, 384)]),
        dict(cnt=1, jobs=[J(3, 4, 256), J(5, 2, 128)]),
        dict(cnt=2, jobs=[J(2, 4, 0, 256), J(1, 3, 0, 192)]),
    ]


MACROS = r"""
; ---- shorthands (register numbers only; every tuple is 4 registers unless noted)
.macro QK d,a,b,c       ; S^T tile: v[d] = K frag a[a] x Q frag a[b] + v[c]
v_mfma_f32_16x16x32_bf16 v[\d:\d+3], a[\a:\a+3], a[\b:\b+3], v[\c:\c+3]
.endm
.macro QZ d,a,b         ; same, accumulator starts at 0
v_mfma_f32_16x16x32_bf16 v[\d:\d+3], a[\a:\a+3], a[\b:\b+3], 0
.endm
.macro PV d,a,b         ; O^T tile: v[d] += V^T frag a[a] x P frag v[b]
v_mfma_f32_16x16x32_bf16 v[\d:\d+3], a[\a:\a+3], v[\b:\b+3], v[\d:\d+3]
.endm
.macro PZ d,a,b
v_mfma_f32_16x16x32_bf16 v[\d:\d+3], a[\a:\a+3], v[\b:\b+3], 0
.endm
.macro LS d,a,b         ; row sums: a[d] += ones v[a] x P frag v[b]
v_mfma_f32_16x16x32_bf16 a[\d:\d+3], v[\a:\a+3], v[\b:\b+3], a[\d:\d+3]
.endm
.macro LZ d,a,b
v_mfma_f32_16x16x32_bf16 a[\d:\d+3], v[\a:\a+3], v[\b:\b+3], 0
.endm
.macro RK d,a,o         ; 16-byte LDS read into a[d]
ds_read_b128 a[\d:\d+3], v\a offset:\o
.endm
.macro RV d,a,o         ; transposing LDS read into a[d:d+1]
ds_read_b64_tr_b16 a[\d:\d+1], v\a offset:\o
.endm
.macro EX d
v_exp_f32 v\d, v\d
.endm
.macro CV d,a,b
v_cvt_pk_bf16_f32 v\d, v\a, v\b
.endm
.macro PM d,r,h         ; v[d:d+1] *= v[r+h]
v_pk_mul_f32 v[\d:\d+1], v[\d:\d+1], v[\r:\r+1] op_sel:[0,\h] op_sel_hi:[1,\h]
.endm
""".strip().split('\n')


def compact(lines):
    import re
    T = r'\[(\d+):\d+\]'
    rules = [
        (MF + r' v%s, a%s, a%s, v%s$' % (T, T, T, T), r'QK \1,\2,\3,\4'),
        (MF + r' v%s, a%s, a%s, 0$' % (T, T, T), r'QZ \1,\2,\3'),
        (MF + r' v%s, a%s, v%s, v\[\1:\d+\]$' % (T, T, T), r'PV \1,\2,\3'),
        (MF + r' v%s, a%s, v%s, 0$' % (T, T, T), r'PZ \1,\2,\3'),
        (MF + r' a%s, v%s, v%s, a\[\1:\d+\]$' % (T, T, T), r'LS \1,\2,\3'),
        (MF + r' a%s, v%s, v%s, 0$' % (T, T, T), r'LZ \1,\2,\3'),
        (r'ds_read_b128 a%s, v(\d+) offset:(\d+)$' % T, r'RK \1,\2,\3'),
        (r'ds_read_b64_tr_b16 a%s, v(\d+) offset:(\d+)$' % T, r'RV \1,\2,\3'),
        (r'v_exp_f32 v(\d+), v\1$', r'EX \1'),
        (r'v_cvt_pk_bf16_f32 v(\d+), v(\d+), v(\d+)$', r'CV \1,\2,\3'),
        (r'v_pk_mul_f32 v%s, v\[\1:\d+\], v%s op_sel:\[0,(\d)\] op_sel_hi:\[1,\3\]$' % (T, T), r'PM \1,\2,\3'),
    ]
    rules = [(re.compile(a), b) for a, b in rules]
    out = []
    for l in lines:
        for rx, rep in rules:
            m = rx.match(l)
            if m:
                l = m.expand(rep)
                break
        out.append(l)
    i = out.index('.text')
    return out[:i + 1] + MACROS + out[i + 1:]


def isize(lines):
    import subprocess, re, os
    fn = '_sz%d' % os.getpid()
    src = ['.amdgcn_target "amdgcn-amd-amdhsa--gfx950"', '.text'] + lines
    open(fn + '.s', 'w').write('\n'.join(src) + '\n')
    subprocess.run(['clang', '-x', 'assembler', '-target', 'amdgcn-amd-amdhsa', '-mcpu=gfx950', '-c',
                    fn + '.s', '-o', fn + '.o'], check=True)
    d = subprocess.run(['llvm-objdump', '-d', '--mcpu=gfx950', fn + '.o'], capture_output=True, text=True).stdout
    sz = [4 * len(m.group(1).split()) for m in re.finditer(r'// [0-9A-F]{12}: ((?:[0-9A-F]{8} ?)+)', d)]
    out, k = [], 0
    for l in lines:
        if l.startswith(';') or l.endswith(':'):
            out.append(0)
        else:
            out.append(sz[k])
            k += 1
    assert k == len(sz), (k, len(sz))
    return out


def layout(lines, ti):
    import re
    HEAD = 4 + 4 * 8 - 4 + 4
    sz = isize(lines)
    out, pos, npad = [], HEAD if cfg.pads else 0, 0
    n = len(lines)
    promo = re.compile(r'(v_(?:mov_b32|exp_f32|add_f32|max_f32|lshlrev_b32|and_b32|xor_b32|rcp_f32|not_b32)) (?!.*0x)')
    for i, l in enumerate(lines):
        s = sz[i]
        if s == 4 and cfg.align and pos % 8 == 0:
            k, run = i + 1, 0
            while k < n and sz[k] in (0, 8) and not lines[k].startswith(MF):
                run += sz[k] == 8
                k += 1
            m = promo.match(l)
            if run >= 5 and m:
                l = l.replace(m.group(1), m.group(1) + '_e64', 1)
                s = 8
        out.append(l)
        pos += s
        if cfg.pads and s and pos >> 12 > npad:
            nxt = next((x for x in lines[i + 1:] if not x.startswith(';')), '')
            good = l.startswith(MF) and not nxt.startswith('s_') and not nxt.startswith('buffer_') and not nxt.endswith(':')
            if good or (pos & 4095) >= 44:
                npad += 1
                out.append('L_t%d_pad%d:' % (ti, npad))
                out.append(';;PAD %d' % npad)
                pos += 4
    if not cfg.pads:
        return out, pos
    tgt = lambda k: ('L_t%d_pad%d' % (ti, k)) if k <= npad else 'L_t%d_go' % ti
    out = ['s_cbranch_execz %s' % tgt(int(l.split()[1]) + 4) if l.startswith(';;PAD') else l for l in out]
    head = ['s_mov_b64 exec, 0']
    for w in range(3):
        head += ['s_cmp_eq_u32 %s, %d' % (sW, w), 's_cbranch_scc1 %s' % tgt(w + 1)]
    head += ['s_branch %s' % tgt(4), 'L_t%d_go:' % ti, 's_mov_b64 exec, -1']
    return head + out, pos


def check_cover(types):
    cov = [[0] * LEN[s] for s in range(8)]
    for t in types:
        for sub in range(t['cnt']):
            for j in t['jobs']:
                q = j.q0 + sub * j.qstride
                for r in range(q, min(q + 64 * j.b, j.L)):
                    cov[j.seq][r] += 1
    assert all(c == 1 for s in cov for c in s)
    assert sum(t['cnt'] for t in types) == 16


def generate(types, verbose=True):
    check_cover(types)
    out = []
    a = out.append
    a('; @launch grid=(256,1,1) block=(256,1,1) lds=%d' % LDS_BYTES)
    a('.amdgcn_target "amdgcn-amd-amdhsa--gfx950"')
    a('.text')
    a('.globl %s' % NAME)
    a('.p2align 12')
    a('.p2align 8')
    a('.type %s,@function' % NAME)
    a('%s:' % NAME)
    out += common_head(types)
    a('L_exit:')
    a('s_endpgm')
    first = 0
    for ti, t in enumerate(types):
        a('.p2align 12')
        a('L_type%d:' % ti)
        if cfg.only < 0 or cfg.only == ti:
            B = Builder(t['jobs'])
            lines = B.build()
            fl, desc = fold(lines, 't%d' % ti)
            if cfg.stamps:
                fl += stamp_tail(ti)
            fl, nbytes = layout(fl, ti)
            out += fl
            desc += ' | %d bytes' % nbytes
            if verbose:
                ov = B.P.overflow
                print('type %d: %d -> %d lines, mfma %d, est cycles %d, overflow %d in %d gaps, nops %d waits %d [%s]' % (
                    ti, len(lines), len(fl), B.P.nmfma, B.P.end_time, sum(x[1] for x in ov), len(ov), B.F.nops, B.F.nwaits, desc),
                    file=sys.stderr)
                if cfg.stamps:
                    print('     est stamps', B.est, file=sys.stderr)
        first += t['cnt']
        a('s_endpgm')
        a('L_end%d:' % ti)
    if cfg.compact:
        out = compact(out)
        a = out.append
    a('.section .rodata,"a"')
    a('.p2align 6')
    a('.amdhsa_kernel %s' % NAME)
    a('  .amdhsa_next_free_vgpr 512')
    a('  .amdhsa_next_free_sgpr 102')
    a('  .amdhsa_accum_offset 256')
    a('  .amdhsa_group_segment_fixed_size 0')
    a('  .amdhsa_kernarg_size 56')
    a('  .amdhsa_user_sgpr_count 2')
    a('  .amdhsa_user_sgpr_kernarg_segment_ptr 1')
    a('  .amdhsa_system_sgpr_workgroup_id_x 1')
    a('.end_amdhsa_kernel')
    return '\n'.join(out) + '\n'


if __name__ == '__main__':
    for o in sys.argv[2:]:
        k, v = o.split('=')
        setattr(cfg, k, v if k.endswith('flags') else int(v))
    txt = generate(make_types())
    open(sys.argv[1], 'w').write(txt)
```

```python
import sys, math, struct
from sched16 import *

NAME = 'standalone__varlen_attn_packed__ragged_kernel'
CU = [0, 992, 1451, 1933, 2583, 3189, 3578, 4512, 5082]
LEN = [CU[i + 1] - CU[i] for i in range(8)]
TOT = CU[-1]
ROW = 4096
MF = 'v_mfma_f32_16x16x32_bf16'


class Cfg:
    stamps = 0
    ld_flags = ''
    q_flags = ' nt'
    store_flags = ' sc0 sc1'
    fold = 1
    pf = 1
    pf_flags = ''
    pf2_flags = ''
    only = -1
    cu_flags = '2222'
    npre = 0
    tier_flags = '000000000'
    pads = 1
    align = 1
    diag = 0
    diagtype = -1
    diagshift = 0
    diagref = 0
    compact = 1
    hmap = 0
    fair = 1
cfg = Cfg()


def f2u(x):
    return struct.unpack('<I', struct.pack('<f', x))[0]


CSCALE = f2u(math.log2(math.e) / math.sqrt(128.0))
LTHR = f2u(2.0 ** 40)

TMP = V(0, 12)
vHM = V(12, 2)
vQF, vQL = V(14), V(15)
SSET = [V(16, 8), V(24, 8)]
PSET = [V(32, 4), V(36, 4)]
NMSET = [V(40 + 4 * i, 4) for i in range(4)]
ONES = V(56, 4)
vKA = V(60, 4)
vVA = V(64, 2)
vDK = V(66, 2)
vDV = V(68, 2)
vOW = V(70)
vG = V(71)
vQO = V(72, 4)
RCP = V(76, 4)
RAW2 = V(80, 48)
OSET = [V(128 + 32 * i, 32) for i in range(4)]
KF = [A(0, 32), A(32, 32)]
VF = [A(64, 32), A(96, 32)]
QSET = [A(128 + 16 * i, 16) for i in range(7)]
LSET = [A(240 + 4 * i, 4) for i in range(4)]

sW, sSUB = S(12), S(46)
sC = S(14, 2)
sKS, sVS = S(16, 4), S(20, 4)
def sQS(j): return S(24 + 8 * j, 4)
def sOS(j): return S(28 + 8 * j, 4)
sOFF = S(40)
sCUR, sPB, sMASK = S(41), S(42), S(43)
def sQROW(j): return S(44 + j)
sT = [S(48 + i) for i in range(6)]
sFLAG, sTHR, sCNT, sEV = S(54), S(55), S(56), S(57)
sINC, sSPEC = S(58, 2), S(60, 2)
sHI = S(71)
sWB = S(47)
sDBG = S(64, 4)

VBASE = 0x10000
STG = 0x20000
STG_W = 4352
LDS_BYTES = STG + 4 * STG_W
GRAY = [0, 0x4000, 0xC000, 0x8000]


class Job:
    def __init__(self, seq, b, q0, qstride=0):
        self.seq, self.b, self.q0, self.qstride = seq, b, q0, qstride
        self.L = LEN[seq]
        self.n = (self.L + 31) // 32
        self.rem = self.L - 32 * (self.n - 1)


class Builder:
    def __init__(self, jobs):
        self.jobs = jobs
        self.P = Prog()
        self.tmpi = self.sti = self.tmi = 0
        self.force, self.fence = [], False
        qi = 0
        for j, job in enumerate(jobs):
            job.Q = QSET[qi:qi + job.b]
            qi += job.b
            sh = 0 if j == 0 else jobs[0].b % 4
            job.slot = [(x + sh) % 4 for x in range(job.b)]
            if j == 0:
                job.raw = [OSET[job.slot[x]].sub(0, 16) for x in range(job.b)]
            else:
                job.raw = [RAW2.sub(16 * x, 16) for x in range(job.b)]

    def add(self, *a, **k):
        return self.P.add(Op(*a, **k))

    def valu(self, text, rd, wr, **k):
        return self.add(text, 'valu', rd, wr, **k)

    def salu(self, text, rd, wr, **k):
        return self.add(text, 'salu', rd, wr, **k)

    def tmp2(self):
        r = TMP.sub(2 * (self.tmpi % 4), 2)
        self.tmpi += 1
        return r

    def tmpm(self):
        r = TMP.sub(8 + 2 * (self.tmi % 2), 2)
        self.tmi += 1
        return r

    def chain(self, ops):
        for p, o in zip(ops, ops[1:]):
            o.preds[p] = max(o.preds.get(p, 0), p.space)

    def stmp(self):
        r = sT[self.sti % len(sT)]
        self.sti += 1
        return r

    def stamp(self, i, after=(), rel=None, chain=None, force=False):
        if cfg.stamps >= 3 and not force:
            return
        if cfg.stamps == 1 or (cfg.stamps == 2 and i < 4) or force:
            r = S(72 + 2 * i, 2)
            self.add('s_memtime %s' % r, 'salu', list(after), [r] + ([chain] if chain else []), rel=rel, dl=rel if rel is not None else -100)

    def job_setup(self, j, rel=None):
        job = self.jobs[j]
        nrec = (CU[job.seq + 1] - 1) * ROW + 256
        q = sQROW(j)
        assert j > 0
        self.salu('s_mul_i32 %s, %s, 0x%x' % (q, sW, 16 * job.b * ROW), [sW], [q], rel=rel)
        if job.qstride:
            t = self.stmp()
            self.salu('s_mul_i32 %s, %s, 0x%x' % (t, sSUB, job.qstride * ROW), [sSUB], [t], rel=rel)
            self.salu('s_add_u32 %s, %s, %s' % (q, q, t), [q, t], [q], rel=rel)
        self.salu('s_add_u32 %s, %s, 0x%x' % (q, q, (CU[job.seq] + job.q0) * ROW), [q], [q], rel=rel)
        for d, d0 in ((sQS(j), sQS(0)), (sOS(j), sOS(0))):
            if j:
                self.salu('s_mov_b64 %s, %s' % (d.sub(0, 2), d0.sub(0, 2)), [d0.sub(0, 2)], [d.sub(0, 2)], rel=rel)
            self.salu('s_mov_b32 %s, 0x%x' % (d.sub(2), nrec), [], [d.sub(2)], rel=rel)
            self.salu('s_mov_b32 %s, 0x20000' % d.sub(3), [], [d.sub(3)], rel=rel)

    def job_masks(self, j, rel=None):
        job = self.jobs[j]
        r = job.rem % 16
        job.G = [(r + 3) // 4, r // 4]
        if r == 0:
            return
        for k in range(2):
            if 0 < job.G[k] < 4 and (k == 0 or job.G[0] != job.G[1]):
                h = vHM.sub(k)
                self.valu('v_subrev_u32 %s, %d, %s' % (h, job.G[k], vG), [vG], [h], rel=rel)
                self.valu('v_ashrrev_i32 %s, 31, %s' % (h, h), [h], [h], rel=rel)
                self.valu('v_not_b32 %s, %s' % (h, h), [h], [h], rel=rel)
                self.valu('v_and_b32 %s, 0xff800000, %s' % (h, h), [h], [h], rel=rel)

    def rowoff(self, g):
        j, i = self.blocks[g]
        job = self.jobs[j]
        return (CU[job.seq] + (0 if i == 0 else job.rem + 32 * (i - 1))) * ROW

    def slot(self, g):
        v = g + self.par
        return GRAY[(v >> 1) % 4] + (v & 1) * 8192

    def dma_off(self, g, rel, mode):
        if mode == 'static':
            self.salu('s_mov_b32 %s, 0x%x' % (sOFF, self.rowoff(g)), [], [sOFF], rel=rel, dl=rel)
        elif mode == 'add':
            self.salu('s_add_u32 %s, %s, 0x%x' % (sOFF, sOFF, self.rowoff(g) - self.rowoff(g - 1)), [sOFF], [sOFF], rel=rel, dl=rel)
        else:
            self.salu('s_sub_u32 %s, %s, 1\ns_cselect_b64 %s, %s, %s' % (sEV, sEV, sINC, sSPEC, sINC), [sEV, sINC, sSPEC], [sEV, sINC],
                      rel=rel - 2, dl=rel - 1, cost=8)
            self.salu('s_add_u32 %s, %s, %s' % (sOFF, sOFF, sINC.sub(0)), [sOFF, sINC.sub(0)], [sOFF], rel=rel, dl=rel)
            self.salu('s_mov_b32 %s, %s' % (sINC.sub(0), sINC.sub(1)), [sINC.sub(1)], [sINC.sub(0)], rel=rel + 4, dl=rel + 6)
            self.salu('s_mov_b32 %s, 0x%x' % (sINC.sub(1), 32 * ROW), [], [sINC.sub(1)], rel=rel + 5, dl=rel + 7)

    def event_init(self, gfirst, rel):
        g2 = self.jobs[0].n
        self.salu('s_mov_b32 %s, %d' % (sEV, g2 - gfirst), [], [sEV], rel=rel)
        for k in range(2):
            self.salu('s_mov_b32 %s, 0x%x' % (sINC.sub(k), 32 * ROW), [], [sINC.sub(k)], rel=rel)
            self.salu('s_mov_b32 %s, 0x%x' % (sSPEC.sub(k), (self.rowoff(g2 + k) - self.rowoff(g2 + k - 1)) & 0xffffffff), [], [sSPEC.sub(k)], rel=rel)

    def dma(self, which, g, rels, static=False, after=(), silent=False):
        base = VBASE if which == 'V' else 0
        n0 = len(self.P.ops)
        if static:
            self.salu('s_add_u32 m0, %s, 0x%x' % (sWB, base + self.slot(g)), [sWB], ['m0'], rel=rels[0], dl=rels[0])
        else:
            assert self.slot(g) & 0xc000 == self.prev
            self.salu('s_add_u32 m0, %s, 0x%x' % (sPB, base + (self.slot(g) & 0x2000)), [sPB], ['m0'], rel=rels[0], dl=rels[0])
        srd, vo = (sKS, vDK) if which == 'K' else (sVS, vDV)
        for t in range(2):
            self.add('buffer_load_dwordx4 %s, %s, %s offen%s%s lds' % (vo.sub(t), srd, sOFF, ' offset:1024' if t else '', cfg.ld_flags),
                     'dma', [vo.sub(t), srd, sOFF, 'm0', ('free', which, self.slot(g)), 'vmorder'] + list(after),
                     [('dma', which, g, t), 'vmorder'], rel=rels[1 + t], dl=rels[1 + t], lat=4)
        for o in self.P.ops[n0:]:
            o.silent = silent

    def barrier(self, pub, free, rel, vmcap=None, after=()):
        rd, wr = ['barseq'] + list(after), ['barseq']
        for which, g in pub:
            rd += [('dma', which, g, 0), ('dma', which, g, 1)]
            wr += [('pub', which, g)]
        for which, g in free:
            rd += self.rdtok[(which, g)]
            wr += [('free', which, self.slot(g))]
        self.add('s_barrier', 'bar', rd, wr, rel=rel, dl=rel).vmcap = vmcap

    def ring_advance(self, rel):
        self.prev = self.cur
        self.cur = GRAY[(GRAY.index(self.cur) + 1) % 4]
        self.salu('s_mov_b32 %s, %s' % (sPB, sCUR), [sCUR], [sPB], rel=rel, dl=rel)
        self.salu('s_xor_b32 %s, %s, %s' % (sCUR, sCUR, sMASK), [sCUR, sMASK], [sCUR], rel=rel, dl=rel)
        for r in [vKA.sub(i) for i in range(4)] + [vVA.sub(i) for i in range(2)]:
            self.valu('v_xor_b32 %s, %s, %s' % (r, sMASK, r), [r, sMASK], [r])
        self.salu('s_xor_b32 %s, %s, 0xc000' % (sMASK, sMASK), [sMASK], [sMASK])

    def rdoff(self, g):
        assert self.cur == 0 or self.slot(g) & 0xc000 == self.cur
        return self.slot(g) - self.cur

    def read_k(self, g, relf):
        j, i = self.blocks[g]
        nsub = 1 if (i == 0 and self.jobs[j].rem <= 16) else 2
        toks = []
        for u in range(nsub):
            for s in range(4):
                f = 4 * u + s
                d = KF[g & 1].sub(4 * f, 4)
                tok = ('rd', 'K', g, f)
                toks.append(tok)
                r = relf(f)
                self.add('ds_read_b128 %s, %s offset:%d' % (d, vKA.sub(s), self.rdoff(g) + u * 4096), 'ds',
                         [vKA.sub(s), ('pub', 'K', g)], [d, tok], rel=r, dl=None if r is None else r + 2)
        self.rdtok[('K', g)] = toks

    def read_v(self, g, relf):
        toks = []
        for db in range(8):
            for jj in range(2):
                n = 2 * db + jj
                d = VF[g & 1].sub(4 * db + 2 * jj, 2)
                tok = ('rd', 'V', g, n)
                toks.append(tok)
                r = relf(n)
                self.add('ds_read_b64_tr_b16 %s, %s offset:%d' % (d, vVA.sub(db & 1), self.rdoff(g) + jj * 4096 + (db >> 1) * 256),
                         'ds', [vVA.sub(db & 1), ('pub', 'V', g)], [d, tok], rel=r, dl=None if r is None else r + 2)
        self.rdtok[('V', g)] = toks

    def q_load(self, j, x, rel=None, after=(), silent=False):
        job = self.jobs[j]
        n0 = len(self.P.ops)
        so = self.stmp()
        self.salu('s_add_u32 %s, %s, 0x%x' % (so, sQROW(j), 16 * x * ROW), [sQROW(j)], [so], rel=None if rel is None else rel(0) - 2)
        for t in range(4):
            T = job.raw[x].sub(4 * t, 4)
            r = None if rel is None else rel(t)
            self.add('buffer_load_dwordx4 %s, %s, %s, %s offen%s' % (T, vQO.sub(t), sQS(j), so, cfg.q_flags), 'vld',
                     [vQO.sub(t), sQS(j), so, 'vmorder'] + list(after), [T, 'vmorder'], rel=r, dl=r, lat=4)
        for o in self.P.ops[n0:]:
            o.silent = silent

    def q_conv(self, j, x, rel=None, after=()):
        job = self.jobs[j]
        after = list(after)
        for t in range(4):
            T = job.raw[x].sub(4 * t, 4)
            for e in range(4):
                y = T.sub(e)
                p = self.tmp2()
                self.valu('v_lshlrev_b32 %s, 16, %s' % (p.sub(0), y), [y] + after, [p.sub(0)], rel=rel)
                self.valu('v_and_b32 %s, %s, %s' % (p.sub(1), sHI, y), [y] + after, [p.sub(1)], rel=rel)
                self.add('v_pk_mul_f32 %s, %s, %s' % (p, p, sC), 'pk', [p, sC], [p], rel=rel)
                self.force.append(self.valu('v_cvt_pk_bf16_f32 %s, %s, %s' % (y, p.sub(0), p.sub(1)), [p], [y], rel=rel))
        self.add('', 'mark', [], ['stgx']).eager = True
        ids = []
        n0 = len(self.P.ops)
        for t in range(4):
            T = job.raw[x].sub(4 * t, 4)
            ids.append(('stg', j, x, 'q', t))
            self.add('ds_write_b128 %s, %s offset:%d' % (vQL, T, t * 4 * 272), 'dsw', [vQL, T, 'stgx'], [ids[-1]], cost=20).space = 52
        self.chain(self.P.ops[-4:])
        for s in range(4):
            d = job.Q[x].sub(4 * s, 4)
            self.add('ds_read_b128 %s, %s offset:%d' % (d, vQF, s * 64), 'ds', [vQF, 'stgx'] + ids, [d], lat=120)
        for o in self.P.ops[n0:]:
            o.eager = True

    def mfma(self, d, a, b, c):
        o = self.add('%s %s, %s, %s, %s' % (MF, d, a, b, c if c else '0'), 'mfma', [a, b] + ([c] if c else []), [d],
                     srcc=[c] if c else [])
        if self.fence:
            for p in self.force:
                o.preds.setdefault(p, 4)
            self.force = []
            self.fence = False

    def qk(self, t):
        job = self.jobs[t['j']]
        if t['h'] in self.qfence:
            assert not self.force
            self.force, self.fence = self.qfence.pop(t['h']), True
        for u in range(t['nsub']):
            d = SSET[t['h'] % 2].sub(4 * u, 4)
            for s in range(4):
                c = d if s else (None if t['first'] else NMSET[t['slot']])
                self.mfma(d, KF[t['g'] & 1].sub(16 * u + 4 * s, 4), job.Q[t['x']].sub(4 * s, 4), c)

    def pv(self, t):
        Pr = PSET[t['h'] % 2]
        L = LSET[t['slot']]
        self.fence = True
        if t['last']:
            self.mfma(L, ONES, Pr, None if t['first'] else L)
        for db in range(8):
            d = OSET[t['slot']].sub(4 * db, 4)
            self.mfma(d, VF[t['g'] & 1].sub(4 * db, 4), Pr, None if t['first'] else d)
        if not t['last']:
            self.mfma(L, ONES, Pr, None if t['first'] else L)

    def sm(self, t):
        job = self.jobs[t['j']]
        Sr, Pr, NM = SSET[t['h'] % 2], PSET[t['h'] % 2], NMSET[t['slot']]
        used = list(range(8))
        if t['first']:
            nr = 4 * t['nsub']
            tt = self.tmpm()
            a, b = tt.sub(0), tt.sub(1)
            self.valu('v_max3_f32 %s, %s, %s, %s' % (a, Sr.sub(0), Sr.sub(1), Sr.sub(2)), [Sr.sub(0, 3)], [a])
            if nr == 4:
                self.valu('v_max_f32 %s, %s, %s' % (a, a, Sr.sub(3)), [a, Sr.sub(3)], [a])
            else:
                self.valu('v_max3_f32 %s, %s, %s, %s' % (b, Sr.sub(4), Sr.sub(5), Sr.sub(6)), [Sr.sub(4, 3)], [b])
                self.valu('v_max3_f32 %s, %s, %s, %s' % (a, a, Sr.sub(3), Sr.sub(7)), [a, Sr.sub(3), Sr.sub(7)], [a])
                self.valu('v_max_f32 %s, %s, %s' % (a, a, b), [tt], [a])
            self.valu('v_mov_b32 %s, %s' % (b, a), [a], [b])
            self.valu('v_permlane32_swap_b32 %s, %s' % (a, b), [tt], [tt], sub='perm', cost=8)
            self.valu('v_max_f32 %s, %s, %s' % (a, a, b), [tt], [a])
            self.valu('v_mov_b32 %s, %s' % (b, a), [a], [b])
            self.valu('v_permlane16_swap_b32 %s, %s' % (a, b), [tt], [tt], sub='perm', cost=8)
            self.valu('v_min_f32_e64 %s, -%s, -%s' % (NM.sub(0), a, b), [tt], [NM.sub(0)])
            r16 = job.rem % 16
            up = t['nsub'] - 1 if r16 else -1
            src, used = {}, []
            made = {}
            for r in range(nr):
                if r // 4 != up:
                    src[r] = NM.sub(0)
                else:
                    k = 0 if (r % 4) < (r16 % 4) or job.G[0] == job.G[1] else 1
                    if job.G[k] == 0:
                        continue
                    if job.G[k] == 4:
                        src[r] = NM.sub(0)
                    else:
                        if k not in made:
                            made[k] = tt.sub(k)
                            self.valu('v_add_f32 %s, %s, %s' % (made[k], NM.sub(0), vHM.sub(k)), [NM.sub(0), vHM.sub(k)], [made[k]])
                        src[r] = made[k]
                used.append(r)
            for r in used:
                y = Sr.sub(r)
                self.valu('v_add_f32 %s, %s, %s' % (y, src[r], y), [y, src[r]], [y])
            for r in range(1, 4):
                self.valu('v_mov_b32 %s, %s' % (NM.sub(r), NM.sub(0)), [NM.sub(0)], [NM.sub(r)])
        for r in range(8):
            y = Sr.sub(r)
            if r in used:
                self.add('v_exp_f32 %s, %s' % (y, y), 'trans', [y], [y])
            if r % 2 == 1:
                p, lo = Pr.sub(r // 2), Sr.sub(r - 1)
                if r in used:
                    self.valu('v_cvt_pk_bf16_f32 %s, %s, %s' % (p, lo, y), [lo, y], [p])
                elif r - 1 in used:
                    self.valu('v_cvt_pk_bf16_f32 %s, %s, 0' % (p, lo), [lo], [p])
                else:
                    self.valu('v_mov_b32 %s, 0' % p, [], [p], rel=self.start[t['h']])

    def epilogue(self, t):
        j, x, sl = t['j'], t['x'], t['slot']
        job = self.jobs[j]
        O, rc, L = OSET[sl], RCP.sub(sl), LSET[sl].sub(0)
        self.valu('v_accvgpr_read_b32 %s, %s' % (rc, L), [L], [rc])
        self.valu('v_cmp_nge_f32 vcc, %s, %s' % (sTHR, rc), [sTHR, rc], ['vcc'])
        st = self.stmp()
        self.salu('s_cmp_lg_u64 vcc, 0\ns_cselect_b32 %s, %d, 0' % (st, 1 << (4 * j + x)), ['vcc'], [st], cost=8)
        self.salu('s_or_b32 %s, %s, %s' % (sFLAG, sFLAG, st), [sFLAG, st], [sFLAG])
        self.add('v_rcp_f32 %s, %s' % (rc, rc), 'trans', [rc], [rc])
        rp, h = V(rc.b & ~1, 2), rc.b & 1
        dl = self.start[t['h'] + 2]
        for db in range(8):
            src = O.sub(4 * db, 4)
            for e in range(2):
                y = src.sub(2 * e, 2)
                self.force.append(self.add('v_pk_mul_f32 %s, %s, %s op_sel:[0,%d] op_sel_hi:[1,%d]' % (y, y, rp, h, h), 'pk', [y, rc], [y]))
            for e in range(2):
                y = src.sub(2 * e, 2)
                o = self.valu('v_cvt_pk_bf16_f32 %s, %s, %s' % (src.sub(e), y.sub(0), y.sub(1)), [y], [src.sub(e)])
                if db < 2:
                    self.force.append(o)
        self.add('', 'mark', [], ['stgx']).eager = True
        ids = []
        n0 = len(self.P.ops)
        for db in range(8):
            ids.append(('stg', j, x, 'o', db))
            self.add('ds_write_b64 %s, %s offset:%d' % (vOW, O.sub(4 * db, 2), db * 32), 'dsw', [vOW, O.sub(4 * db, 2), 'stgx'], [ids[-1]],
                     dl=dl + 2 * db)
        self.chain(self.P.ops[-8:])
        so = self.stmp()
        self.salu('s_add_u32 %s, %s, 0x%x' % (so, sQROW(j), 16 * x * ROW), [sQROW(j)] + ids[:1], [so])
        for tt in range(4):
            d = job.Q[x].sub(4 * tt, 4)
            self.add('ds_read_b128 %s, %s offset:%d' % (d, vQL, tt * 4 * 272), 'ds', [vQL, 'stgx'] + ids, [d], dl=dl + 16, lat=120)
        for tt in range(4):
            d = job.Q[x].sub(4 * tt, 4)
            self.add('buffer_store_dwordx4 %s, %s, %s, %s offen%s' % (d, vQO.sub(tt), sOS(j), so, cfg.store_flags), 'vst',
                     [d, vQO.sub(tt), sOS(j), so], [], lat=4, dl=dl + 26 + 4 * tt)
        for o in self.P.ops[n0:]:
            o.eager = True

    def build(self):
        jobs = self.jobs
        self.blocks = [(j, i) for j, job in enumerate(jobs) for i in range(job.n)]
        G = len(self.blocks)
        self.rdtok = {}
        tiles, step0 = [], {}
        for g, (j, i) in enumerate(self.blocks):
            job = jobs[j]
            step0[g] = len(tiles)
            for x in range(job.b):
                tiles.append(dict(j=j, x=x, g=g, i=i, h=len(tiles), first=(i == 0), last=(i == job.n - 1),
                                  nsub=(1 if (i == 0 and job.rem <= 16) else 2), slot=job.slot[x]))
        H = len(tiles)
        step0[G] = H
        T = lambda h: tiles[h] if 0 <= h < H else None
        start, m = {}, 0
        for h in range(-1, H + 3):
            start[h] = m
            if T(h + 1): m += 4 * T(h + 1)['nsub']
            if T(h - 1): m += 9
        self.start = start
        N3 = [None] * 3
        b0 = jobs[0].b
        self.par = par = G & 1
        self.cur, self.prev = 0, None
        two = len(jobs) > 1

        self.dma('K', 0, N3, static=True, silent=True)
        self.q_load(0, 0, silent=True)
        self.dma('V', 0, N3, static=True, silent=True)
        self.q_load(0, 1, silent=True)
        later = [('Q', x) for x in range(2, b0)] + [('B', 1), ('B', 2)]

        def issue(after, eager):
            if not later:
                return
            kind, v = later.pop(0)
            n0 = len(self.P.ops)
            if kind == 'Q':
                self.q_load(0, v, after=after)
            else:
                self.dma_off(v, None, 'static')
                self.dma('K', v, N3, static=True, after=after)
                self.dma('V', v, N3, static=True)
            for o in self.P.ops[n0:]:
                o.eager = eager
                if not eager:
                    o.space = 0
        for k in range(cfg.npre):
            if cfg.fair:
                self.add('s_barrier', 'bar', ['barseq', 'vmorder'], ['barseq', 'vmorder'])
            issue([], False)
        self.add('', 'mark', ['vmorder'], ['issued'])
        self.stamp(1, ['issued'], chain='issued')
        self.job_masks(0)
        for j in range(1, len(jobs)):
            self.job_setup(j)
        self.qfence = {}
        for x in range(b0):
            prev = ['issued'] + ([('conv', x - 1)] if x else [])
            self.add('', 'pseudo', [jobs[0].raw[x].sub(0, 4)] + prev, [('arr', x)], rel=start[x - 2] if x >= 2 else None)
            if x == 0:
                self.stamp(2, [('arr', 0)], chain=('arr', 0))
            issue([('arr', x)], True)
            self.q_conv(0, x, after=[('arr', x)])
            self.add('', 'mark', [jobs[0].raw[x]], [('conv', x)]).eager = True
            self.qfence[x - 1] = self.force
            self.force = []
            if x == 0:
                self.barrier([('K', 0)], [], None, after=[('conv', 0)])
                n0 = len(self.P.ops)
                self.read_k(0, lambda f: None)
                for o in self.P.ops[n0 - 1:]:
                    o.eager = True
            if x == 1:
                self.barrier([('V', 0)], [], None, after=[('conv', 1)])
                self.P.ops[-1].eager = True
                self.read_v(0, lambda n: None)
        while later:
            issue([('conv', b0 - 1)], True)
        nxt = 3
        nfree = 8 - par
        pubd = 1
        evmode = False
        conv_at = {}
        if two:
            for x in range(jobs[1].b):
                conv_at[step0[jobs[0].n] + x - 3] = x
            gq = jobs[0].n - 4
            gq -= (gq + 1 + par) & 1

        if cfg.stamps == 3:
            for k in range(6):
                self.stamp(1 + k, [], rel=start[k - 1], force=True)
        if cfg.stamps == 4:
            h0 = (step0[jobs[0].n] - 3) if two else H - 5
            for k in range(6):
                self.stamp(1 + k, [], rel=start[h0 + k], force=True)
        if cfg.stamps == 5:
            for k in range(6):
                self.stamp(1 + k, [], rel=start[step0[k + 1]], force=True)
        self.qk(T(0))
        for h in range(0, H + 1):
            t = T(h)
            b = start[h]
            newstep = t and t['x'] == 0
            if newstep:
                g = t['g']
                W = start[step0[g + 1]] - b
                w0 = b - 2
                if g + 1 < G:
                    turn = (g + 1 + par) & 1 == 0
                    if turn or pubd <= g + 1:
                        hi = g + 2 if (turn and min(g + 4, G) <= nxt - (1 if g + 4 < G else 0)) else g + 1
                        pub = [(w, k) for k in range(pubd, hi + 1) for w in 'KV']
                        pubd = hi + 1
                        fr = [(w, k) for k in (g - 1, g) if k >= 0 for w in 'KV'] if turn else []
                        regular = turn and nxt >= min(G, g + 7) and g > 2
                        cap = None
                        if regular:
                            cap = 16 if self.lastdma >= g - 1 else 0
                        self.barrier(pub, fr, start[min(b0 - 2, 1)] if g == 0 else w0 - 2, cap)
                        if turn:
                            nfree += 2
                            if regular:
                                self.add(';;LOOPPOINT', 'loop', ['barseq'], [], rel=w0 - 1)
                            self.ring_advance(w0)
            if h % 8 == 0:
                self.add('; ---- unit %d' % h, 'mark', [], [], rel=b - 1, dl=b - 1)
            if T(h + 1):
                self.qk(T(h + 1))
            if newstep and g + 1 < G:
                a = (W - 10) / 24.0
                self.read_k(g + 1, (lambda f: None) if g == 0 else (lambda f: w0 + int(f * a)))
            if h in conv_at:
                self.q_conv(1, conv_at[h], rel=b - 8)
            if T(h - 1):
                self.pv(T(h - 1))
                if T(h - 1)['last']:
                    self.epilogue(T(h - 1))
            if newstep and g + 1 < G:
                self.read_v(g + 1, (lambda n: None) if g == 0 else (lambda n: w0 + int((8 + n) * a)))
                e = start[step0[g + 1] - 1] - 1
                self.add('', 'pseudo', [KF[(g + 1) & 1]], [], rel=e, dl=e)
                e = start[step0[g + 1]] - 4
                self.add('', 'pseudo', [VF[(g + 1) & 1]], [], rel=e, dl=e)
                todo = []
                while nxt < min(G, nfree, g + 8) and len(todo) < (int(cfg.cu_flags[g]) if g < len(cfg.cu_flags) else 2):
                    todo.append(nxt)
                    nxt += 1
                steady = todo == [g + 7] and g > 2
                nd = 4 * len(todo)
                pos = [w0 + 3 + int((k + 0.5) * (W - 8) / max(nd, 1)) for k in range(nd)]
                for q, k in enumerate(todo):
                    p = pos[4 * q:4 * q + 4]
                    mode = 'static'
                    if steady:
                        mode = 'add'
                        if two and t['j'] == 0 and (evmode or k <= jobs[0].n):
                            if not evmode:
                                self.event_init(k, 0)
                                evmode = True
                            mode = 'event'
                    self.dma_off(k, p[0] - 3, mode)
                    self.dma('K', k, [p[0] - 2, p[0], p[1]], static=not steady)
                    self.dma('V', k, [p[2] - 2, p[2], p[3]], static=not steady)
                    self.lastdma = g
                if two and g == 1:
                    self.job_masks(1, rel=b)
                if two and g == gq:
                    nq = 4 * jobs[1].b
                    for x in range(jobs[1].b):
                        self.q_load(1, x, rel=lambda tt, x=x: w0 + 5 + int((4 * x + tt) * (2 * W - 16) / nq))
            if t:
                self.sm(t)
            if h == b0:
                self.stamp(3, [], rel=b)
            if t and t['first'] and t['j'] == 1 and t['x'] == 0:
                self.stamp(4, [], rel=start[h - jobs[0].b])
            if t and t['j'] == 1 and t['i'] == 1 and t['x'] == 0:
                self.stamp(5, [], rel=b)
            if h == H - jobs[-1].b:
                self.stamp(6, [], rel=b)
        ops = self.P.schedule()
        self.est = [(o.text.split()[1], o.time) for o in ops if o.text.startswith('s_memtime')]
        F = Finalizer()
        lines = [l for l in F.run(ops) if l]
        self.F = F
        return lines


def fold(lines, tag):
    chunks, cur = [], []
    for l in lines:
        if l == ';;LOOPPOINT':
            chunks.append(cur)
            cur = []
        else:
            cur.append(l)
    chunks.append(cur)
    keyf = lambda c: '\n'.join(x for x in c if not x.startswith(';'))
    keys = [keyf(c) for c in chunks]
    out, i, nl, desc = [], 0, 0, []
    while i < len(chunks):
        r = 1
        while cfg.fold and 0 < i and i + r < len(chunks) - 1 and keys[i + r] == keys[i]:
            r += 1
        if r > 1:
            lab = 'L_%s_loop%d' % (tag, nl)
            nl += 1
            out.append('s_mov_b32 %s, %d' % (sCNT, r - 1))
            out.append('%s:' % lab)
            out += [x for x in chunks[i] if not x.startswith(';')]
            out.append('s_sub_u32 %s, %s, 1' % (sCNT, sCNT))
            out.append('s_cbranch_scc0 %s' % lab)
        else:
            out += chunks[i]
        desc.append('%dx%d' % (r, len(chunks[i])))
        i += r
    return out, ' '.join(desc)


def common_head(types):
    L = []
    a = L.append
    a('s_cmp_ge_u32 s2, 256')
    a('s_cbranch_scc1 L_exit')
    a('s_load_dwordx4 s[4:7], s[0:1], 0')
    a('s_load_dwordx2 s[8:9], s[0:1], 16')
    a('s_load_dwordx2 s[10:11], s[0:1], 32')
    if cfg.stamps:
        a('s_load_dwordx2 %s, s[0:1], 48' % sDBG.sub(0, 2))
        a('s_memtime s[72:73]')
        a('s_memrealtime s[92:93]')
    if cfg.pf == 1:
        a('s_getpc_b64 s[62:63]')
        a('L_pf:')
        a('s_lshr_b32 s3, s2, 3')
        a('v_lshl_add_u32 v6, v0, 5, s3')
        a('v_lshlrev_b32 v6, 7, v6')
        a('v_min_u32 v6, L_end%d-L_pf-4, v6' % (len(types) - 1))
        a('global_load_dword v127, v6, s[62:63]%s' % cfg.pf_flags)
    a('s_lshr_b32 s13, s2, 4')
    if cfg.pf == 2:
        a('s_getpc_b64 s[68:69]')
        a('L_pf:')
        first = 0
        for ti, t in enumerate(types):
            if ti == 0:
                a('s_mov_b32 s70, L_type0-L_pf')
            else:
                a('s_cmp_ge_u32 s13, %d' % first)
                a('s_cselect_b32 s70, L_type%d-L_pf, s70' % ti)
            first += t['cnt']
        a('v_lshrrev_b32 v6, 2, v0')
        a('v_lshl_add_u32 v6, v6, 7, s70')
        a('global_load_dword v127, v6, s[68:69]%s' % cfg.pf_flags)
        a('v_lshl_add_u32 v126, v0, 7, s70')
    a('v_lshrrev_b32 v1, 6, v0')
    a('v_and_b32 v0, 63, v0')
    a('v_readfirstlane_b32 %s, v1' % sW)
    first = 0
    for ti, t in enumerate(types):
        j = t['jobs'][0]
        par = sum(x.n for x in t['jobs']) & 1
        p0 = (CU[j.seq] + j.q0) | CU[j.seq] << 16
        p1 = CU[j.seq + 1] | j.b << 16 | (j.qstride // 64) << 20 | first << 24 | par << 28 | int(cfg.tier_flags[ti]) << 29
        if ti == 0:
            a('s_mov_b32 s44, 0x%x' % p0)
            a('s_mov_b32 s45, 0x%x' % p1)
        else:
            a('s_cmp_ge_u32 s13, %d' % first)
            a('s_cselect_b32 s44, 0x%x, s44' % p0)
            a('s_cselect_b32 s45, 0x%x, s45' % p1)
        first += t['cnt']
    a('v_and_b32 v2, 15, v0')
    a('v_lshrrev_b32 %s, 4, v0' % vG)
    a('v_lshl_add_u32 v6, v1, 3, %s' % vG)
    for t in range(2):
        if t:
            a('v_add_u32 v6, 4, v6')
        a('v_and_b32 v7, 15, v6')
        a('v_xor_b32 v7, v7, v2')
        a('v_lshlrev_b32 v7, 4, v7')
        a('v_lshl_add_u32 %s, v6, 12, v7' % vDK.sub(t))
    a('v_subrev_u32 %s, 0x400, %s' % (vDK.sub(1), vDK.sub(1)))
    a('v_lshlrev_b32 v3, 4, v2')
    a('v_lshl_add_u32 %s, %s, 12, v3' % (vQO.sub(0), vG))
    for t in range(1, 4):
        a('v_add_u32 %s, 0x%x, %s' % (vQO.sub(t), 4 * t * ROW, vQO.sub(0)))
    a('s_and_b32 s3, s2, 7')
    a('s_bfe_u32 s62, s2, 0x10003')
    a('s_lshl_b32 s3, s3, %d' % (9 if cfg.hmap == 0 else 8))
    a('s_lshl_b32 s62, s62, %d' % (8 if cfg.hmap == 0 else 11))
    a('s_add_u32 s3, s3, s62')
    a('s_lshr_b32 %s, s44, 16' % sOFF)
    a('s_lshl_b32 %s, %s, 12' % (sOFF, sOFF))
    a('s_and_b32 s44, s44, 0xffff')
    a('s_bfe_u32 s62, s45, 0x40018')
    a('s_sub_u32 s46, s13, s62')
    a('s_bfe_u32 s62, s45, 0x40014')
    a('s_mul_i32 s62, s62, s46')
    a('s_lshl_b32 s62, s62, 2')
    a('s_bfe_u32 s63, s45, 0x40010')
    a('s_mul_i32 s63, s63, %s' % sW)
    a('s_add_u32 s62, s62, s63')
    a('s_lshl_b32 s62, s62, 4')
    a('s_add_u32 s44, s44, s62')
    a('s_lshl_b32 s44, s44, 12')
    a('s_and_b32 s62, s45, 0xffff')
    a('s_lshl_b32 s62, s62, 12')
    a('s_sub_u32 %s, s62, 0x%x' % (sQS(0).sub(2), ROW - 256))
    a('s_mov_b32 %s, 0x20000' % sQS(0).sub(3))
    a('s_lshl_b32 %s, %s, 11' % (sWB, sW))
    a('s_bfe_u32 s62, s45, 0x1001c')
    a('s_lshl_b32 s62, s62, 13')
    a('s_add_u32 s62, s62, %s' % sWB)
    a('s_mov_b32 m0, s62')
    for d in (sKS, sVS):
        a('s_mov_b32 %s, 0x%x' % (d.sub(2), (TOT - 1) * ROW + 256))
        a('s_mov_b32 %s, 0x20000' % d.sub(3))
    a('s_add_u32 s63, s44, 0x%x' % (16 * ROW))
    if cfg.stamps == 2:
        a('s_memtime s[80:81]')
    a('s_waitcnt lgkmcnt(0)')
    for d, p in ((sKS, 6), (sQS(0), 4), (sVS, 8)):
        a('s_add_u32 %s, s%d, s3' % (d.sub(0), p))
        a('s_addc_u32 %s, s%d, 0' % (d.sub(1), p + 1))
    for t in range(2):
        a('buffer_load_dwordx4 %s, %s, %s offen%s%s lds' % (vDK.sub(t), sKS, sOFF, ' offset:1024' if t else '', cfg.ld_flags))
    if '1' in cfg.tier_flags or '3' in cfg.tier_flags:
        a('s_bitcmp1_b32 s45, 29')
        a('s_cbranch_scc0 L_tier1')
        a('s_waitcnt vmcnt(0)')
        a('L_tier1:')
    for t in range(4):
        a('buffer_load_dwordx4 %s, %s, %s, s44 offen%s' % (OSET[0].sub(4 * t, 4), vQO.sub(t), sQS(0), cfg.q_flags))
    if cfg.stamps == 2:
        a('s_memtime s[82:83]')
    a('s_add_u32 m0, s62, 0x%x' % VBASE)
    a('v_bfe_u32 v8, v0, 2, 2')
    a('v_and_b32 v9, 3, v0')
    a('v_lshl_add_u32 v6, v1, 3, v8')
    a('v_lshlrev_b32 v7, 4, v9')
    a('v_lshl_add_u32 v7, %s, 6, v7' % vG)
    a('v_lshl_add_u32 %s, v6, 12, v7' % vDV.sub(0))
    a('v_xor_b32 %s, 32, %s' % (vDV.sub(1), vDV.sub(0)))
    a('v_add_u32 %s, 0x%x, %s' % (vDV.sub(1), 4 * ROW - 1024, vDV.sub(1)))
    if cfg.pf == 2:
        a('v_add_u32 v126, 0x2000, v126')
        a('v_min_u32 v126, L_end%d-L_pf-4, v126' % (len(types) - 1))
    a('s_add_u32 %s, s10, s3' % sOS(0).sub(0))
    a('s_addc_u32 %s, s11, 0' % sOS(0).sub(1))
    a('s_mov_b32 %s, %s' % (sOS(0).sub(2), sQS(0).sub(2)))
    a('s_mov_b32 %s, 0x20000' % sOS(0).sub(3))
    a('s_mov_b32 %s, %s' % (sCUR, sWB))
    a('s_mov_b32 %s, 0x4000' % sMASK)
    a('s_mov_b32 %s, 0x%x' % (sC.sub(0), CSCALE))
    a('s_mov_b32 %s, 0x%x' % (sC.sub(1), CSCALE))
    a('s_mov_b32 %s, 0x%x' % (sTHR, LTHR))
    a('s_mov_b32 %s, 0' % sFLAG)
    a('s_mov_b32 %s, 0xffff0000' % sHI)
    a('v_xor_b32 v6, %s, v2' % vG)
    a('v_lshlrev_b32 v6, 4, v6')
    a('v_lshl_add_u32 %s, v2, 8, v6' % vKA.sub(0))
    for s in range(1, 4):
        a('v_xor_b32 %s, 0x%x, %s' % (vKA.sub(s), 64 * s, vKA.sub(0)))
    a('v_and_b32 v6, 1, %s' % vG)
    a('v_lshlrev_b32 v6, 5, v6')
    a('v_lshl_add_u32 v6, v9, 3, v6')
    a('v_lshl_add_u32 v6, v8, 6, v6')
    a('v_lshl_add_u32 v6, %s, 10, v6' % vG)
    a('v_add_u32 %s, 0x%x, v6' % (vVA.sub(0), VBASE))
    a('v_xor_b32 %s, 32, %s' % (vVA.sub(1), vVA.sub(0)))
    a('v_mul_u32_u24 v6, 0x%x, v1' % STG_W)
    a('v_add_u32 v6, 0x%x, v6' % STG)
    a('v_mul_u32_u24 v7, 272, v2')
    a('v_add_u32 v7, v7, v6')
    a('v_lshl_add_u32 %s, %s, 4, v7' % (vQF, vG))
    a('v_lshl_add_u32 %s, %s, 3, v7' % (vOW, vG))
    a('v_mul_u32_u24 v7, 272, %s' % vG)
    a('v_add3_u32 %s, v7, v6, v3' % vQL)
    a('v_cmp_eq_u32 vcc, 0, v9')
    a('v_mov_b32 v6, 0x3f803f80')
    a('s_nop 0')
    a('v_cndmask_b32 %s, 0, v6, vcc' % ONES.sub(0))
    for k in range(1, 4):
        a('v_mov_b32 %s, %s' % (ONES.sub(k), ONES.sub(0)))
    if '2' in cfg.tier_flags or '3' in cfg.tier_flags:
        a('s_bitcmp1_b32 s45, 30')
        a('s_cbranch_scc0 L_tier2')
        a('s_waitcnt vmcnt(0)')
        a('L_tier2:')
    if cfg.fair:
        a('s_barrier')
    for t in range(2):
        a('buffer_load_dwordx4 %s, %s, %s offen%s%s lds' % (vDV.sub(t), sVS, sOFF, ' offset:1024' if t else '', cfg.ld_flags))
    for t in range(4):
        a('buffer_load_dwordx4 %s, %s, %s, s63 offen%s' % (OSET[1].sub(4 * t, 4), vQO.sub(t), sQS(0), cfg.q_flags))
    if cfg.stamps == 2:
        a('s_memtime s[84:85]')
    acc = 0
    for ti, t in enumerate(types):
        acc += t['cnt']
        if ti < len(types) - 1:
            a('s_cmp_lt_u32 s13, %d' % acc)
            a('s_cbranch_scc0 L_not%d' % ti)
        a('s_getpc_b64 s[62:63]')
        a('L_pc%d:' % ti)
        a('s_add_u32 s62, s62, L_type%d-L_pc%d' % (ti, ti))
        a('s_addc_u32 s63, s63, 0')
        a('s_setpc_b64 s[62:63]')
        a('L_not%d:' % ti)
    return L


def stamp_tail(ti):
    L = []
    a = L.append
    a('s_memtime s[86:87]')
    a('s_waitcnt vmcnt(0)')
    a('s_memtime s[88:89]')
    a('s_memrealtime s[94:95]')
    a('s_waitcnt lgkmcnt(0)')
    if cfg.diag:
        if cfg.diagtype >= 0 and cfg.diagtype != ti:
            return L
        if cfg.diag == 1:
            a('s_mov_b32 s62, 10000')
        elif cfg.diag == 2:
            a('s_sub_u32 s62, s94, s92')
            a('s_lshl_b32 s62, s62, 3')
        else:
            a('s_sub_u32 s62, s%d, s%d' % (72 + 2 * (cfg.diag - 10), 72 + 2 * cfg.diagref))
            a('s_lshr_b32 s62, s62, %d' % cfg.diagshift)
            a('s_add_u32 s62, s62, 5000')
        a('s_min_u32 s62, s62, 60000')
        a('L_spin%d:' % ti)
        a('s_memrealtime s[96:97]')
        a('s_waitcnt lgkmcnt(0)')
        a('s_sub_u32 s63, s96, s92')
        a('s_cmp_lt_u32 s63, s62')
        a('s_cbranch_scc1 L_spin%d' % ti)
        return L
    a('s_mov_b32 s66, 0x100000')
    a('s_mov_b32 s67, 0x20000')
    a('s_lshl_b32 s62, s2, 2')
    a('s_add_u32 s62, s62, %s' % sW)
    a('s_lshl_b32 s62, s62, 6')
    a('v_mov_b32 v1, 0')
    for i, r in enumerate([72 + 2 * k for k in range(9)] + [92, 94]):
        a('v_mov_b32 v2, s%d' % r)
        a('buffer_store_dword v2, v1, s[64:67], s62 offen offset:%d' % (4 * i))
    return L


def make_types():
    J = Job
    return [
        dict(cnt=4, jobs=[J(0, 4, 0, 256)]),
        dict(cnt=3, jobs=[J(6, 4, 0, 256)]),
        dict(cnt=1, jobs=[J(6, 3, 768), J(5, 2, 0)]),
        dict(cnt=1, jobs=[J(3, 3, 512), J(7, 3, 384)]),
        dict(cnt=1, jobs=[J(4, 4, 0), J(5, 3, 256)]),
        dict(cnt=2, jobs=[J(4, 3, 256, 192), J(7, 3, 0, 192)]),
        dict(cnt=1, jobs=[J(3, 4, 0), J(1, 2, 384)]),
        dict(cnt=1, jobs=[J(3, 4, 256), J(5, 2, 128)]),
        dict(cnt=2, jobs=[J(2, 4, 0, 256), J(1, 3, 0, 192)]),
    ]


MACROS = r"""
; ---- shorthands (register numbers only; every tuple is 4 registers unless noted)
.macro QK d,a,b,c       ; S^T tile: v[d] = K frag a[a] x Q frag a[b] + v[c]
v_mfma_f32_16x16x32_bf16 v[\d:\d+3], a[\a:\a+3], a[\b:\b+3], v[\c:\c+3]
.endm
.macro QZ d,a,b         ; same, accumulator starts at 0
v_mfma_f32_16x16x32_bf16 v[\d:\d+3], a[\a:\a+3], a[\b:\b+3], 0
.endm
.macro PV d,a,b         ; O^T tile: v[d] += V^T frag a[a] x P frag v[b]
v_mfma_f32_16x16x32_bf16 v[\d:\d+3], a[\a:\a+3], v[\b:\b+3], v[\d:\d+3]
.endm
.macro PZ d,a,b
v_mfma_f32_16x16x32_bf16 v[\d:\d+3], a[\a:\a+3], v[\b:\b+3], 0
.endm
.macro LS d,a,b         ; row sums: a[d] += ones v[a] x P frag v[b]
v_mfma_f32_16x16x32_bf16 a[\d:\d+3], v[\a:\a+3], v[\b:\b+3], a[\d:\d+3]
.endm
.macro LZ d,a,b
v_mfma_f32_16x16x32_bf16 a[\d:\d+3], v[\a:\a+3], v[\b:\b+3], 0
.endm
.macro RK d,a,o         ; 16-byte LDS read into a[d]
ds_read_b128 a[\d:\d+3], v\a offset:\o
.endm
.macro RV d,a,o         ; transposing LDS read into a[d:d+1]
ds_read_b64_tr_b16 a[\d:\d+1], v\a offset:\o
.endm
.macro EX d
v_exp_f32 v\d, v\d
.endm
.macro CV d,a,b
v_cvt_pk_bf16_f32 v\d, v\a, v\b
.endm
.macro PM d,r,h         ; v[d:d+1] *= v[r+h]
v_pk_mul_f32 v[\d:\d+1], v[\d:\d+1], v[\r:\r+1] op_sel:[0,\h] op_sel_hi:[1,\h]
.endm
""".strip().split('\n')


def compact(lines):
    import re
    T = r'\[(\d+):\d+\]'
    rules = [
        (MF + r' v%s, a%s, a%s, v%s$' % (T, T, T, T), r'QK \1,\2,\3,\4'),
        (MF + r' v%s, a%s, a%s, 0$' % (T, T, T), r'QZ \1,\2,\3'),
        (MF + r' v%s, a%s, v%s, v\[\1:\d+\]$' % (T, T, T), r'PV \1,\2,\3'),
        (MF + r' v%s, a%s, v%s, 0$' % (T, T, T), r'PZ \1,\2,\3'),
        (MF + r' a%s, v%s, v%s, a\[\1:\d+\]$' % (T, T, T), r'LS \1,\2,\3'),
        (MF + r' a%s, v%s, v%s, 0$' % (T, T, T), r'LZ \1,\2,\3'),
        (r'ds_read_b128 a%s, v(\d+) offset:(\d+)$' % T, r'RK \1,\2,\3'),
        (r'ds_read_b64_tr_b16 a%s, v(\d+) offset:(\d+)$' % T, r'RV \1,\2,\3'),
        (r'v_exp_f32 v(\d+), v\1$', r'EX \1'),
        (r'v_cvt_pk_bf16_f32 v(\d+), v(\d+), v(\d+)$', r'CV \1,\2,\3'),
        (r'v_pk_mul_f32 v%s, v\[\1:\d+\], v%s op_sel:\[0,(\d)\] op_sel_hi:\[1,\3\]$' % (T, T), r'PM \1,\2,\3'),
    ]
    rules = [(re.compile(a), b) for a, b in rules]
    out = []
    for l in lines:
        for rx, rep in rules:
            m = rx.match(l)
            if m:
                l = m.expand(rep)
                break
        out.append(l)
    i = out.index('.text')
    return out[:i + 1] + MACROS + out[i + 1:]


def isize(lines):
    import subprocess, re, os
    fn = '_sz%d' % os.getpid()
    src = ['.amdgcn_target "amdgcn-amd-amdhsa--gfx950"', '.text'] + lines
    open(fn + '.s', 'w').write('\n'.join(src) + '\n')
    subprocess.run(['clang', '-x', 'assembler', '-target', 'amdgcn-amd-amdhsa', '-mcpu=gfx950', '-c',
                    fn + '.s', '-o', fn + '.o'], check=True)
    d = subprocess.run(['llvm-objdump', '-d', '--mcpu=gfx950', fn + '.o'], capture_output=True, text=True).stdout
    sz = [4 * len(m.group(1).split()) for m in re.finditer(r'// [0-9A-F]{12}: ((?:[0-9A-F]{8} ?)+)', d)]
    out, k = [], 0
    for l in lines:
        if l.startswith(';') or l.endswith(':'):
            out.append(0)
        else:
            out.append(sz[k])
            k += 1
    assert k == len(sz), (k, len(sz))
    return out


def layout(lines, ti):
    import re
    HEAD = 4 + 4 * 8 - 4 + 4
    sz = isize(lines)
    out, pos, npad = [], HEAD if cfg.pads else 0, 0
    n = len(lines)
    promo = re.compile(r'(v_(?:mov_b32|exp_f32|add_f32|max_f32|lshlrev_b32|and_b32|xor_b32|rcp_f32|not_b32)) (?!.*0x)')
    for i, l in enumerate(lines):
        s = sz[i]
        if s == 4 and cfg.align and pos % 8 == 0:
            k, run = i + 1, 0
            while k < n and sz[k] in (0, 8) and not lines[k].startswith(MF):
                run += sz[k] == 8
                k += 1
            m = promo.match(l)
            if run >= 5 and m:
                l = l.replace(m.group(1), m.group(1) + '_e64', 1)
                s = 8
        out.append(l)
        pos += s
        if cfg.pads and s and pos >> 12 > npad:
            nxt = next((x for x in lines[i + 1:] if not x.startswith(';')), '')
            good = l.startswith(MF) and not nxt.startswith('s_') and not nxt.startswith('buffer_') and not nxt.endswith(':')
            if good or (pos & 4095) >= 44:
                npad += 1
                out.append('L_t%d_pad%d:' % (ti, npad))
                out.append(';;PAD %d' % npad)
                pos += 4
    if not cfg.pads:
        return out, pos
    tgt = lambda k: ('L_t%d_pad%d' % (ti, k)) if k <= npad else 'L_t%d_go' % ti
    out = ['s_cbranch_execz %s' % tgt(int(l.split()[1]) + 4) if l.startswith(';;PAD') else l for l in out]
    head = ['s_mov_b64 exec, 0']
    for w in range(3):
        head += ['s_cmp_eq_u32 %s, %d' % (sW, w), 's_cbranch_scc1 %s' % tgt(w + 1)]
    head += ['s_branch %s' % tgt(4), 'L_t%d_go:' % ti, 's_mov_b64 exec, -1']
    return head + out, pos


def check_cover(types):
    cov = [[0] * LEN[s] for s in range(8)]
    for t in types:
        for sub in range(t['cnt']):
            for j in t['jobs']:
                q = j.q0 + sub * j.qstride
                for r in range(q, min(q + 64 * j.b, j.L)):
                    cov[j.seq][r] += 1
    assert all(c == 1 for s in cov for c in s)
    assert sum(t['cnt'] for t in types) == 16


def generate(types, verbose=True):
    check_cover(types)
    out = []
    a = out.append
    a('; @launch grid=(256,1,1) block=(256,1,1) lds=%d' % LDS_BYTES)
    a('.amdgcn_target "amdgcn-amd-amdhsa--gfx950"')
    a('.text')
    a('.globl %s' % NAME)
    a('.p2align 12')
    a('.p2align 8')
    a('.type %s,@function' % NAME)
    a('%s:' % NAME)
    out += common_head(types)
    a('L_exit:')
    a('s_endpgm')
    first = 0
    for ti, t in enumerate(types):
        a('.p2align 12')
        a('L_type%d:' % ti)
        if cfg.only < 0 or cfg.only == ti:
            B = Builder(t['jobs'])
            lines = B.build()
            fl, desc = fold(lines, 't%d' % ti)
            if cfg.stamps:
                fl += stamp_tail(ti)
            fl, nbytes = layout(fl, ti)
            out += fl
            desc += ' | %d bytes' % nbytes
            if verbose:
                ov = B.P.overflow
                print('type %d: %d -> %d lines, mfma %d, est cycles %d, overflow %d in %d gaps, nops %d waits %d [%s]' % (
                    ti, len(lines), len(fl), B.P.nmfma, B.P.end_time, sum(x[1] for x in ov), len(ov), B.F.nops, B.F.nwaits, desc),
                    file=sys.stderr)
                if cfg.stamps:
                    print('     est stamps', B.est, file=sys.stderr)
        first += t['cnt']
        a('s_endpgm')
        a('L_end%d:' % ti)
    if cfg.compact:
        out = compact(out)
        a = out.append
    a('.section .rodata,"a"')
    a('.p2align 6')
    a('.amdhsa_kernel %s' % NAME)
    a('  .amdhsa_next_free_vgpr 512')
    a('  .amdhsa_next_free_sgpr 102')
    a('  .amdhsa_accum_offset 256')
    a('  .amdhsa_group_segment_fixed_size 0')
    a('  .amdhsa_kernarg_size 56')
    a('  .amdhsa_user_sgpr_count 2')
    a('  .amdhsa_user_sgpr_kernarg_segment_ptr 1')
    a('  .amdhsa_system_sgpr_workgroup_id_x 1')
    a('.end_amdhsa_kernel')
    return '\n'.join(out) + '\n'


if __name__ == '__main__':
    for o in sys.argv[2:]:
        k, v = o.split('=')
        setattr(cfg, k, v if k.endswith('flags') else int(v))
    txt = generate(make_types())
    open(sys.argv[1], 'w').write(txt)
```

```python
from common import *
from common import _check, _hip
def gen(depth, n, colbytes=256, flags='', lds=True, contig=False, touch=False):
    b = []; a = b.append
    a("s_load_dwordx2 s[16:17], s[0:1], 0"); a("s_load_dwordx2 s[12:13], s[0:1], 48")
    a("v_lshrrev_b32 v4, 6, v0"); a("s_nop 1"); a("v_readfirstlane_b32 s20, v4"); a("s_nop 4")
    if colbytes == 256:
        a("v_lshrrev_b32 v1, 4, v0"); a("v_and_b32 v2, 15, v0"); rows = 16
    else:
        a("v_lshrrev_b32 v1, 3, v0"); a("v_and_b32 v2, 7, v0"); rows = 32
    a("v_lshlrev_b32 v2, 4, v2"); a("v_lshl_add_u32 v1, v1, 12, v2")
    if contig: a("v_lshlrev_b32 v1, 4, v0")
    if touch:
        a("v_lshrrev_b32 v1, 1, v0"); a("v_and_b32 v2, 1, v0"); a("v_lshlrev_b32 v2, 7, v2"); a("v_lshl_add_u32 v1, v1, 12, v2"); rows = 128
    a("s_mul_i32 s3, s2, %d" % (n * rows * 4096))
    a("s_lshl_b32 s21, s20, 10"); a("s_mov_b32 m0, s21")
    a("s_waitcnt lgkmcnt(0)")
    a("s_mov_b32 s18, 0x7fffffff"); a("s_mov_b32 s19, 0x20000")
    a("s_memrealtime s[40:41]")
    for it in range(n):
        if touch: a(f"buffer_load_dword v{8 + it % 16}, v1, s[16:19], s3 offen {flags}")
        elif lds: a(f"buffer_load_dwordx4 v1, s[16:19], s3 offen {flags} lds")
        else: a(f"buffer_load_dwordx4 v[{8 + 4 * (it % 32)}:{11 + 4 * (it % 32)}], v1, s[16:19], s3 offen {flags}")
        a("s_add_u32 s3, s3, %d" % (rows * 4096))
        if it >= depth: a(f"s_waitcnt vmcnt({depth})")
    a("s_waitcnt vmcnt(0)")
    a("s_memrealtime s[46:47]"); a("s_waitcnt lgkmcnt(0)")
    a("s_mov_b32 s14, 0x1000000"); a("s_mov_b32 s15, 0x20000")
    a("s_lshl_b32 s62, s2, 2"); a("s_add_u32 s62, s62, s20"); a("s_lshl_b32 s62, s62, 3")
    a("v_mov_b32 v1, 0"); a("v_mov_b32 v4, s40"); a("v_mov_b32 v5, s46")
    a("buffer_store_dwordx2 v[4:5], v1, s[12:15], s62 offen")
    return "\n".join(b)
if __name__ == "__main__":
    on_gpu = os.path.exists("/dev/kfd")
    if on_gpu:
        src = DeviceBuffer(1100 << 20); memset(src, 0)
        big2 = DeviceBuffer(512 << 20); memset(big2, 0)
        ws = DeviceBuffer(32 << 20)
        b = []; a = b.append
        a("s_load_dwordx2 s[12:13], s[0:1], 0"); a("s_waitcnt lgkmcnt(0)")
        a("s_mov_b32 s14, 0x20000000"); a("s_mov_b32 s15, 0x20000")
        a("v_lshlrev_b32 v1, 4, v0"); a("s_lshl_b32 s3, s2, 16")
        for i in range(16):
            a("buffer_load_dwordx4 v[%d:%d], v1, s[12:15], s3 offen" % (4 + 4 * i, 7 + 4 * i)); a("s_add_u32 s3, s3, 4096")
        a("s_waitcnt vmcnt(0)")
        ksw = AsmKernel(build(wrap("\n".join(b), grid=8192, block=256, lds=0, nv=72, acc=72), "mb_kernel", "h2"), "mb_kernel", check=False)
        ka2 = pack_ptr_kernargs([big2.ptr] * 7)
    cases = [("plain d12", dict(depth=12, n=64)), ("plain d28", dict(depth=28, n=64)), ("plain d4", dict(depth=4, n=64)), ("plain d6", dict(depth=6, n=64)), ("plain d8", dict(depth=8, n=64))]
    for f in ("sc0", "sc1", "sc0 sc1", "nt", "sc1 nt", "sc0 sc1 nt"): cases.append((f + " d28", dict(depth=28, n=64, flags=f)))
    cases += [("reg d28", dict(depth=28, n=64, lds=False)), ("contig d28", dict(depth=28, n=64, contig=True)), ("touch d8 (x8 bytes)", dict(depth=8, n=16, touch=True)), ("touch d2 (x8 bytes)", dict(depth=2, n=16, touch=True))]
    for name, kw in cases:
        grid, cb, n = 16, 256, kw['n']
        co = build(wrap(gen(**kw), grid=256, block=256, lds=163840), "mb_kernel", "mb21")
        if not on_gpu: continue
        k = AsmKernel(co, "mb_kernel", check=False)
        res = []
        for col in (0, 1, 2, 3, 15):
            ka = pack_ptr_kernargs([src.ptr + col * cb] + [ws.ptr] * 6)
            t = []
            for rep in range(5):
                ksw.launch((8192, 1, 1), (256, 1, 1), ka2, 0); sync()
                k.launch((grid, 1, 1), (256, 1, 1), ka, 163840); sync()
                r = ws.to_numpy(np.uint32, (1024, 2)).astype(np.int64)[:grid * 4]
                t.append(np.mean(r[:, 1] - r[:, 0]) / 100.0)
            res.append(np.median(t))
        tot = grid * n * 4096
        print(name, "us per col:", " ".join(f"{x:.2f}" for x in res), "| GB/s per CU:", " ".join(f"{tot/x/1e3/grid:.1f}" for x in res), flush=True)
        k.unload()
```
